```python
import torch

def _softmax(x, axis=-1):
    return torch.softmax(x, dim=axis)
def _gelu(x):
    return torch.nn.functional.gelu(x, approximate="tanh")
def _silu(x):
    return torch.nn.functional.silu(x)
def _sigmoid(x):
    return torch.sigmoid(x)
def _layernorm(x, axis=-1, eps=1e-5):
    m = x.mean(dim=axis, keepdim=True)
    v = x.var(dim=axis, keepdim=True, unbiased=False)
    return (x - m) / torch.sqrt(v + eps)
def _scatter_add(tgt, idx, src, axis=0):
    return tgt.clone().index_add_(axis, idx, src)
def _segment_sum(src, seg, n):
    out = torch.zeros((n,) + src.shape[1:], dtype=src.dtype)
    return out.index_add_(0, seg, src)
def _pad(x, pw):
    flat = tuple(v for pair in reversed(pw) for v in pair)
    return torch.nn.functional.pad(x, flat)

kernel_name = 'concat_heads__mha_block_cached__gqa_block_cached__near_ridge'

def setup_inputs():

    _w = (lambda a: (lambda t: t.to(torch.bfloat16) if t.is_floating_point() else t)(torch.as_tensor(a)))
    def _A_setup():
        B, Sq, D = 16, 96, 448
        H, Sk, Dh = 16, 96, 256
        return {
            "x": _w((lambda *s: torch.randn(*s, dtype=torch.bfloat16) * 0.8)(B, Sq, D)),
            "k_cache": _w((lambda *s: torch.randn(*s, dtype=torch.bfloat16) * 0.8)(B, H, Sk, Dh)),
            "v_cache": _w((lambda *s: torch.randn(*s, dtype=torch.bfloat16) * 0.05)(B, H, Sk, Dh)),
            "wq": _w((lambda *s: torch.randn(*s, dtype=torch.bfloat16) * 0.8)(D, H * Dh) * (D ** -0.5)),
            "wo": _w((lambda *s: torch.randn(*s, dtype=torch.bfloat16) * 0.05)(H * Dh, D) * ((H * Dh) ** -0.5)),
        }
    _A_in = _A_setup()

    def _B_setup():
        B, Sq, D = 16, 96, 448
        Hq, Hkv, Sk, Dh = 16, 16, 96, 256
        assert Hq % Hkv == 0, (Hq, Hkv)
        return {
            "x": _w((lambda *s: torch.randn(*s, dtype=torch.bfloat16) * 0.8)(B, Sq, D)),
            "k_cache": _w((lambda *s: torch.randn(*s, dtype=torch.bfloat16) * 0.8)(B, Hkv, Sk, Dh)),
            "v_cache": _w((lambda *s: torch.randn(*s, dtype=torch.bfloat16) * 0.05)(B, Hkv, Sk, Dh)),
            "wq": _w((lambda *s: torch.randn(*s, dtype=torch.bfloat16) * 0.8)(D, Hq * Dh) * (D ** -0.5)),
            "wo": _w((lambda *s: torch.randn(*s, dtype=torch.bfloat16) * 0.05)(Hq * Dh, D) * ((Hq * Dh) ** -0.5)),
        }
    _B_in = _B_setup()

    return {
        "A_x": _A_in["x"],
        "A_k_cache": _A_in["k_cache"],
        "A_v_cache": _A_in["v_cache"],
        "A_wq": _A_in["wq"],
        "A_wo": _A_in["wo"],
        "B_x": _B_in["x"],
        "B_k_cache": _B_in["k_cache"],
        "B_v_cache": _B_in["v_cache"],
        "B_wq": _B_in["wq"],
        "B_wo": _B_in["wo"],
    }

def reference(A_x, A_k_cache, A_v_cache, A_wq, A_wo, B_x, B_k_cache, B_v_cache, B_wq, B_wo):
    def _A_ref(x, k_cache, v_cache, wq, wo):
        B, Sq, D = x.shape
        H, Dh = 16, 256
        q = (lambda x, *d: x.permute(*d))((x @ wq).reshape(B, Sq, H, Dh), 0, 2, 1, 3)
        scores = torch.einsum("bhqd,bhkd->bhqk", q, k_cache) * (Dh ** -0.5)
        p = _softmax(scores, axis=-1)
        o = torch.einsum("bhqk,bhkd->bhqd", p, v_cache)
        return (lambda x, *d: x.permute(*d))(o, 0, 2, 1, 3).reshape(B, Sq, H * Dh) @ wo

    def _B_ref(x, k_cache, v_cache, wq, wo):
        B, Sq, D = x.shape
        Hq, Dh = 16, 256
        Hkv = k_cache.shape[1]
        rep = Hq // Hkv
        q = (lambda x, *d: x.permute(*d))((x @ wq).reshape(B, Sq, Hq, Dh), 0, 2, 1, 3)
        k = (lambda x, n, axis: torch.repeat_interleave(x, n, dim=axis))(k_cache, rep, axis=1)
        v = (lambda x, n, axis: torch.repeat_interleave(x, n, dim=axis))(v_cache, rep, axis=1)
        scores = torch.einsum("bhqd,bhkd->bhqk", q, k) * (Dh ** -0.5)
        p = _softmax(scores, axis=-1)
        o = torch.einsum("bhqk,bhkd->bhqd", p, v)
        return (lambda x, *d: x.permute(*d))(o, 0, 2, 1, 3).reshape(B, Sq, Hq * Dh) @ wo

    a = _A_ref(A_x, A_k_cache, A_v_cache, A_wq, A_wo)
    b = _B_ref(B_x, B_k_cache, B_v_cache, B_wq, B_wo)
    return torch.concatenate([a, b], axis=-1)
```

```python
import re

def vr(b, n=1):
    return f"v{b}" if n == 1 else f"v[{b}:{b+n-1}]"
def sr(b, n=1):
    return f"s{b}" if n == 1 else f"s[{b}:{b+n-1}]"
def R(b, n=1):
    return list(range(b, b+n))

class Emit:
    def __init__(self):
        self.lines = []
        self.reset()
    def reset(self):
        self.pos = 0
        self.lastw = {}
        self.mfma_c = {}
        self.sgpr_valu = {}
        self.m0_pos = -100
        self.store_data = {}
        self.lgkm = []
        self.vm = []
    def raw(self, t):
        self.lines.append(t)
    def comment(self, t):
        self.lines.append("    ; " + t)
    def label(self, name):
        self.lines.append(name + ":")
    def nop(self, n):
        while n > 0:
            k = min(n, 16)
            self.lines.append(f"    s_nop {k-1}")
            self.pos += k
            n -= k
    def _need(self, req_pos):
        if req_pos > self.pos:
            self.nop(req_pos - self.pos)
    def wait_lgkm(self, n):
        if len(self.lgkm) > n:
            assert n <= 15
            self.lines.append(f"    s_waitcnt lgkmcnt({n})")
            self.pos += 1
            self.lgkm = self.lgkm[len(self.lgkm)-n:] if n > 0 else []
    def wait_vm(self, n):
        if len(self.vm) > n:
            assert n <= 63
            self.lines.append(f"    s_waitcnt vmcnt({n})")
            self.pos += 1
            self.vm = self.vm[len(self.vm)-n:] if n > 0 else []
    def wait_vm_tag(self, tags):
        idx = -1
        for i, (t, _) in enumerate(self.vm):
            if t in tags: idx = i
        if idx >= 0:
            self.wait_vm(min(62, len(self.vm) - 1 - idx))
    def _mem_deps(self, regs):
        regs = set(regs)
        idx = -1
        for i, d in enumerate(self.lgkm):
            if d & regs: idx = i
        if idx >= 0:
            self.wait_lgkm(min(14, len(self.lgkm) - 1 - idx))
        idx = -1
        for i, (t, d) in enumerate(self.vm):
            if d & regs: idx = i
        if idx >= 0:
            self.wait_vm(min(62, len(self.vm) - 1 - idx))
    def ins(self, text, kind, rd=(), wr=(), c=(), srd=(), swr=(), tag=None, wide=False):
        rd = list(rd); wr = list(wr); c = list(c)
        self._mem_deps(rd + wr + c)
        req = 0
        allr = rd + c
        for r in allr:
            lw = self.lastw.get(r)
            if lw is None: continue
            p, k = lw
            if kind == "mfma":
                if k in ("valu", "trans"): req = max(req, p + 1 + 2)
                elif k == "mfma":
                    if r in c and tuple(c) == self.lastw_c.get(r): pass
                    elif r in c: req = max(req, p + 1 + 6)
                    else: req = max(req, p + 1 + 8)
            else:
                if k == "mfma": req = max(req, p + 1 + 8)
                elif k == "trans" and kind in ("valu", "perm", "rfl"): req = max(req, p + 1 + 1)
                if k in ("valu", "trans") and kind == "perm": req = max(req, p + 1 + 2)
                if k in ("valu", "trans") and kind == "rfl": req = max(req, p + 1 + 1)
        for r in wr:
            lw = self.lastw.get(r)
            if lw is not None and lw[1] == "mfma" and kind != "mfma":
                req = max(req, lw[0] + 1 + 8)
            if lw is not None and lw[1] == "mfma" and kind == "mfma" and r not in c:
                req = max(req, lw[0] + 1 + 8)
            if kind in ("valu", "trans", "perm") and r in self.mfma_c:
                req = max(req, self.mfma_c[r] + 1 + 3)
            if r in self.store_data:
                req = max(req, self.store_data[r] + 1 + 2)
        for s in srd:
            if s in self.sgpr_valu:
                if kind in ("vmem", "dma"): req = max(req, self.sgpr_valu[s] + 1 + 5)
                elif kind in ("valu", "trans"): req = max(req, self.sgpr_valu[s] + 1 + 2)
                else: req = max(req, self.sgpr_valu[s] + 1 + 2)
        if kind == "dma":
            req = max(req, self.m0_pos + 1 + 1)
        self._need(req)
        self.lines.append("    " + text)
        p = self.pos
        self.pos += 1
        k2 = {"perm": "valu", "rfl": "valu"}.get(kind, kind)
        if kind in ("valu", "trans", "mfma", "perm"):
            for r in wr:
                self.lastw[r] = (p, k2)
                if kind == "mfma":
                    self.lastw_c[r] = tuple(wr)
        else:
            for r in wr:
                self.lastw.pop(r, None)
        if kind == "mfma":
            for r in c: self.mfma_c[r] = p
        if kind == "rfl" or (kind == "valu" and swr):
            for s in swr: self.sgpr_valu[s] = p
        elif swr:
            for s in swr:
                self.sgpr_valu.pop(s, None)
                if s == "m0": self.m0_pos = p
        if kind == "ds":
            self.lgkm.append(set(wr))
        if kind in ("vmem", "dma"):
            self.vm.append((tag, set(wr)))
            assert len(self.vm) <= 63, "too many outstanding vm ops"
        if wide:
            for r in rd: self.store_data[r] = p
    lastw_c = {}
    def salu(self, text, swr=(), srd=()):
        self.ins(text, "salu", swr=swr, srd=srd)
    def valu(self, op, d, *srcs, extra="", n=1, kind="valu"):
        rd = []; srd = []; ops = []
        for s in srcs:
            if isinstance(s, int): rd += R(s, n); ops.append(vr(s, n))
            else:
                ops.append(s)
                m = re.fullmatch(r"-?v(\d+)", s)
                if m: rd.append(int(m.group(1)))
                m = re.fullmatch(r"s(\d+)", s)
                if m: srd.append(int(m.group(1)))
                m = re.fullmatch(r"s\[(\d+):(\d+)\]", s)
                if m: srd += list(range(int(m.group(1)), int(m.group(2))+1))
        self.ins(f"{op} {vr(d, n)}, " + ", ".join(ops) + (" " + extra if extra else ""), kind, rd=rd, wr=R(d, n), srd=srd)
    def mfma(self, d, a, b, c=None):
        if c is None:
            self.ins(f"v_mfma_f32_16x16x32_bf16 {vr(d,4)}, {vr(a,4)}, {vr(b,4)}, 0", "mfma", rd=R(a,4)+R(b,4), wr=R(d,4))
        else:
            self.ins(f"v_mfma_f32_16x16x32_bf16 {vr(d,4)}, {vr(a,4)}, {vr(b,4)}, {vr(c,4)}", "mfma", rd=R(a,4)+R(b,4), wr=R(d,4), c=R(c,4))
    def ds_read(self, op, d, n, addr, off):
        assert 0 <= off < 65536, off
        self.ins(f"{op} {vr(d,n)}, {vr(addr)} offset:{off}", "ds", rd=[addr], wr=R(d,n))
    def ds_write(self, op, addr, s, n, off):
        assert 0 <= off < 65536, off
        self.ins(f"{op} {vr(addr)}, {vr(s,n)} offset:{off}", "ds", rd=[addr]+R(s,n), wide=True)
    def cvt(self, d, a, b):
        self.valu("v_cvt_pk_bf16_f32", d, a, b)
    def barrier(self):
        self.lines.append("    s_barrier")
        self.pos += 1
    def text(self):
        return "\n".join(self.lines) + "\n"
```

```python
import sys, os
from collections import deque
sys.path.insert(0, os.path.dirname(os.path.abspath(__file__)))
from asmlib import *

NAME = "concat_heads__mha_block_cached__gqa_block_cached__near_ridge"
K1 = NAME + "_kernel"
K2 = "reduce_kernel"

SLOT = 33792
S_Q = [130048, 0, 62464, 96256]
X_Q = [33792, 46080]
KB = 62464
VB = 0
T_O = [101376, 0, 33792, 67584]
EXB = 135168
PART = 86016
PROF_OFF = 64 << 20
DUMP_OFF = 32 << 20

sX, sWQ, sK, sV, sWO, sWS = 40, 44, 48, 52, 56, 60
sB, sP, sBR, sW, sROT, sHH, sRH, sLW = 64, 65, 66, 67, 68, 69, 70, 71
sT0, sT1, sT2, sT3 = 72, 73, 74, 75
sC = 76
sCH = 77
sMQ, sROW, sXK, sMX, sMO, sOC = 78, 79, 80, 81, 82, 83
sTM = 84

class Cfg:
    LA = 7
    DELAY = 2
    prof = False
    dump = None
    kv_sched = None
    noload = False
    nokv = False
    spread = True
    lprio = 0
    cprio = 0
    noexch = False
    only = 0

class Grp:
    def __init__(self, reads, mfmas, barrier=False, after=None, fill=None):
        self.reads = reads; self.mfmas = mfmas; self.barrier = barrier
        self.after = after or []; self.fill = fill or []

class F:
    def __init__(self, fn, ready=-1, cost=1, dsw=False, due=1<<30):
        self.fn = fn; self.ready = ready; self.cost = cost; self.dsw = dsw; self.due = due

RING = 216
def ring(i): return RING + 4 * (i % 8)

def stream(E, groups, cfg, nxt=0, base=0):
    side = deque(); fill = deque()
    last_emit = [-100]
    n = len(groups)
    def try_queue(i, force=False):
        nonlocal nxt
        while nxt < n and nxt <= i + cfg.LA:
            H = groups[nxt]
            if H.barrier:
                must = force or nxt <= i
                if must:
                    while side: side.popleft()()
                    while any(f.dsw for f in fill): fill.popleft().fn()
                elif side or any(f.dsw for f in fill) or i < last_emit[0] + cfg.DELAY:
                    break
                E.wait_lgkm(0); E.barrier(); H.barrier = False
                fill.extend(H.after)
            side.extend(H.reads); nxt += 1
    for i, G in enumerate(groups):
        if not G.mfmas: continue
        try_queue(i)
        assert nxt > i
        while any(f.due <= i for f in fill):
            f = fill.popleft(); assert f.ready < i; f.fn()
        fill.extend(G.fill)
        while any(r in side for r in G.reads): side.popleft()()
        for mf in G.mfmas:
            mf()
            budget = 2
            nrd = 1 if (cfg.spread and len(side) <= 3) else 2
            while budget > 0 and side and nrd > 0:
                side.popleft()(); budget -= 1; last_emit[0] = i; nrd -= 1
            while budget > 0 and fill and fill[0].ready < i:
                f = fill.popleft(); f.fn(); budget -= f.cost
                if f.dsw: last_emit[0] = i
    try_queue(n + 100, force=True)
    while side: side.popleft()()
    while fill: fill.popleft().fn()

def dump_regs(E, regs, tag):
    E.comment("dump " + tag)
    E.wait_lgkm(0)
    E.nop(16)
    E.salu(f"s_lshl_b32 s{sT0}, s2, 2", swr=[sT0])
    E.salu(f"s_add_u32 s{sT0}, s{sT0}, s{sW}", swr=[sT0])
    E.salu(f"s_mul_i32 s{sT0}, s{sT0}, {256*256}", swr=[sT0])
    E.salu(f"s_add_u32 s{sT0}, s{sT0}, {DUMP_OFF}", swr=[sT0])
    E.valu("v_lshlrev_b32", 254, "2", 255)
    for k, r in enumerate(regs):
        E.ins(f"buffer_store_dword v{r}, v254, s[{sWS}:{sWS+3}], s{sT0} offen", "vmem", rd=[r, 254])
        E.salu(f"s_add_u32 s{sT0}, s{sT0}, 256", swr=[sT0])
        if k % 32 == 31: E.wait_vm(0)
    E.wait_vm(0)

def prologue(E):
    E.salu("s_cmp_ge_u32 s2, 256")
    E.raw("    s_cbranch_scc1 L_exit")
    E.raw("    s_load_dwordx16 s[16:31], s[0:1], 0")
    E.raw("    s_load_dwordx4 s[32:35], s[0:1], 64")
    E.raw("    s_load_dwordx2 s[36:37], s[0:1], 96")
    E.valu("v_lshrrev_b32", 1, "6", 0)
    E.valu("v_and_b32", 255, "63", 0)
    E.salu(f"s_and_b32 s{sT0}, s2, 7")
    E.salu(f"s_lshr_b32 s{sBR}, s{sT0}, 2")
    E.salu(f"s_and_b32 s{sT0}, s{sT0}, 3")
    E.salu(f"s_lshr_b32 s{sT1}, s2, 3")
    E.salu(f"s_and_b32 s{sB}, s{sT1}, 15")
    E.salu(f"s_lshr_b32 s{sT1}, s{sT1}, 4")
    E.salu(f"s_lshl_b32 s{sP}, s{sT0}, 1")
    E.salu(f"s_add_u32 s{sP}, s{sP}, s{sT1}")
    E.ins(f"v_readfirstlane_b32 s{sW}, v1", "rfl", rd=[1], swr=[sW])
    E.salu(f"s_mul_i32 s{sT1}, s{sT1}, 3")
    E.salu(f"s_add_u32 s{sROT}, s{sB}, s{sT1}")
    for _ in range(2):
        E.salu(f"s_sub_u32 s{sT0}, s{sROT}, 7")
        E.salu(f"s_cmp_ge_u32 s{sROT}, 7")
        E.salu(f"s_cselect_b32 s{sROT}, s{sT0}, s{sROT}")
    E.raw("    s_waitcnt lgkmcnt(0)")
    E.salu(f"s_cmp_eq_u32 s{sBR}, 0")
    for srd, a, b, nrec in ((sX, 16, 26, 1376256), (sK, 18, 28, 12582912), (sV, 20, 30, 12582912),
                            (sWQ, 22, 32, 3670016), (sWO, 24, 34, 3670016)):
        E.salu(f"s_cselect_b32 s{srd}, s{a}, s{b}")
        E.salu(f"s_cselect_b32 s{srd+1}, s{a+1}, s{b+1}")
        E.salu(f"s_mov_b32 s{srd+2}, {nrec}")
        E.salu(f"s_mov_b32 s{srd+3}, 0x00020000")
    E.salu(f"s_mov_b32 s{sWS}, s36")
    E.salu(f"s_mov_b32 s{sWS+1}, s37")
    E.salu(f"s_mov_b32 s{sWS+2}, 0x10000000")
    E.salu(f"s_mov_b32 s{sWS+3}, 0x00020000")
    E.salu(f"s_cmp_ge_u32 s{sW}, 4", srd=[sW])
    E.raw("    s_cbranch_scc1 L_loader")

aW = [248, 249, 250, 251]; aX = 252; aK = 253; aV = 254; vL = 255
XF = 192

def compute(E, cfg):
    L = vL
    if cfg.cprio: E.salu(f"s_setprio {cfg.cprio}")
    E.salu(f"s_lshr_b32 s{sHH}, s{sW}, 1", srd=[sW])
    E.salu(f"s_and_b32 s{sRH}, s{sW}, 1", srd=[sW])
    E.salu(f"s_mov_b32 s{sC}, 0x3db8aa3b")
    m, g, r, c4, btr, t1, t2 = 1, 2, 3, 4, 5, 6, 7
    E.valu("v_and_b32", m, "15", L)
    E.valu("v_lshrrev_b32", g, "4", L)
    E.valu("v_lshrrev_b32", r, "2", m)
    E.valu("v_and_b32", c4, "3", m)
    E.valu("v_and_b32", t1, "1", g)
    E.valu("v_lshlrev_b32", t1, "2", t1)
    E.valu("v_add_u32", t1, t1, r)
    E.valu("v_mul_u32_u24", btr, "1056", t1)
    E.valu("v_lshlrev_b32", t1, "3", c4)
    E.valu("v_add_u32", btr, btr, t1)
    E.valu("v_lshrrev_b32", t2, "1", g)
    E.valu("v_mul_u32_u24", t1, "16896", t2)
    E.valu("v_add_u32", t1, t1, btr)
    E.salu(f"s_lshl_b32 s{sT0}, s{sHH}, 9")
    for k in range(4):
        E.salu(f"s_add_u32 s{sT1}, s{sT0}, {S_Q[k]}")
        E.valu("v_add_u32", aW[k], f"s{sT1}", t1)
    E.salu(f"s_mul_i32 s{sT0}, s{sRH}, 3072")
    E.valu("v_lshlrev_b32", t1, "4", L)
    E.valu("v_add_u32", aX, f"s{sT0}", t1)
    E.salu(f"s_mul_i32 s{sT0}, s{sHH}, {96*528}")
    E.salu(f"s_add_u32 s{sT0}, s{sT0}, {KB}")
    E.valu("v_mul_u32_u24", t1, "528", m)
    E.valu("v_lshlrev_b32", aK, "3", g)
    E.valu("v_add_u32", aK, aK, t1)
    E.valu("v_add_u32", aK, f"s{sT0}", aK)
    E.salu(f"s_mul_i32 s{sT0}, s{sHH}, 50688")
    E.valu("v_lshlrev_b32", t1, "9", t2)
    E.valu("v_add_u32", t1, t1, btr)
    E.valu("v_add_u32", aV, f"s{sT0}", t1)

    def acc(t, rt): return (3 * t + rt) * 4
    def qf(s, rt): return 24 * s + 4 * rt
    def sacc(kt, rt): return 24 * kt + 12 + 4 * rt
    def tr(d, addr, off): return lambda: E.ds_read("ds_read_b64_tr_b16", d, 2, addr, off)
    def rd64(d, addr, off): return lambda: E.ds_read("ds_read_b64", d, 2, addr, off)
    def rd128(d, addr, off): return lambda: E.ds_read("ds_read_b128", d, 4, addr, off)
    def mf(d, a, b, c): return lambda: E.mfma(d, a, b, c)
    def cv(d, a, b): return lambda: E.cvt(d, a, b)

    groups = []
    for s in range(14):
        xs = XF + 12 * (s & 1)
        for t in range(16):
            gi = len(groups)
            reads = []
            if t == 0:
                reads += [rd128(xs + 4 * rt, aX, X_Q[(s >> 1) & 1] + (s & 1) * 6144 + rt * 1024) for rt in range(3)]
            reads += [tr(ring(gi) + 2 * i, aW[s % 4], i * 8448 + 32 * t) for i in range(2)]
            mfmas = [mf(acc(t, rt), ring(gi), xs + 4 * rt, None if s == 0 else acc(t, rt)) for rt in range(3)]
            fill = []
            if s == 13 and (t & 1) and cfg.dump != 'Q':
                sq = t >> 1
                for rt in range(3):
                    a0 = acc(t - 1, rt); a1 = acc(t, rt)
                    due = 224 + sq
                    fill += [F(cv(a0, a0, a0 + 1), gi, due=due), F(cv(a0 + 1, a0 + 2, a0 + 3), gi, due=due),
                             F(cv(a0 + 2, a1, a1 + 1), gi, due=due), F(cv(a0 + 3, a1 + 2, a1 + 3), gi, due=due)]
            groups.append(Grp(reads, mfmas, barrier=(t == 0), fill=fill))
    MX = [192, 193, 194]; TM = [195, 196, 197]
    if cfg.dump == 'Q':
        groups.append(Grp([], [], barrier=True))
        stream(E, groups, cfg)
        dump_regs(E, list(range(192)), 'Q')
        for _ in range(15, 33): E.barrier()
        return
    for kt in range(6):
        for s in range(8):
            gi = len(groups)
            reads = [rd64(ring(gi) + 2 * i, aK, kt * 8448 + 64 * s + 32 * i) for i in range(2)]
            mfmas = [mf(sacc(kt, rt), ring(gi), qf(s, rt), None if s == 0 else sacc(kt, rt)) for rt in range(3)]
            fill = []
            if s == 7:
                for rt in range(3):
                    a = sacc(kt, rt)
                    if kt == 0:
                        fill.append(F((lambda a=a, rt=rt: E.valu("v_max3_f32", MX[rt], a, a + 1, a + 2)), gi))
                        fill.append(F((lambda a=a, rt=rt: E.valu("v_max_f32", MX[rt], MX[rt], a + 3)), gi))
                    else:
                        fill.append(F((lambda a=a, rt=rt: E.valu("v_max3_f32", MX[rt], MX[rt], a, a + 1)), gi))
                        fill.append(F((lambda a=a, rt=rt: E.valu("v_max3_f32", MX[rt], MX[rt], a + 2, a + 3)), gi))
            groups.append(Grp(reads, mfmas, barrier=(kt == 0 and s == 0), fill=fill))
    groups.append(Grp([], [], barrier=True))
    stream(E, groups, cfg)
    if cfg.dump == 'S':
        dump_regs(E, list(range(200)), 'S')
        for _ in range(16, 33): E.barrier()
        return
    for op in ("v_permlane32_swap_b32", "v_permlane16_swap_b32"):
        for rt in range(3): E.valu("v_mov_b32", TM[rt], MX[rt])
        for rt in range(3):
            E.ins(f"{op} v{MX[rt]}, v{TM[rt]}", "perm", rd=[MX[rt], TM[rt]], wr=[MX[rt], TM[rt]])
        for rt in range(3): E.valu("v_max_f32", MX[rt], MX[rt], TM[rt])
    for rt in range(3): E.valu("v_mul_f32", MX[rt], f"s{sC}", MX[rt])
    ONES = 200; SUM = 204
    for k in range(4): E.valu("v_mov_b32", ONES + k, "0x3f803f80")
    aOk, aOs = [248, 249], [250, 251]
    aEw, aEr, vSt = 252, 253, 198
    E.valu("v_lshrrev_b32", TM[0], "5", L)
    E.valu("v_mul_u32_u24", TM[0], "384", TM[0])
    E.valu("v_sub_u32", TM[0], aV, TM[0])
    E.salu(f"s_mul_i32 s{sT0}, s{sHH}, {50688 - 16896 - 64}")
    E.valu("v_subrev_u32", aOk[0], f"s{sT0}", TM[0])
    E.valu("v_add_u32", aOk[1], "67584", aOk[0])
    groups2 = []
    def pf(s, rt): return sacc(2 * s, rt)
    def softmax_rt(rt):
        for kt in range(6):
            for k in range(4):
                a = sacc(kt, rt) + k
                E.valu("v_fma_f32", a, a, f"s{sC}", f"-v{MX[rt]}")
            for k in range(4):
                a = sacc(kt, rt) + k
                E.valu("v_exp_f32", a, a, kind="trans")
            if kt & 1:
                a0 = sacc(kt - 1, rt); a1 = sacc(kt, rt)
                E.cvt(a0, a0, a0 + 1); E.cvt(a0 + 1, a0 + 2, a0 + 3)
                E.cvt(a0 + 2, a1, a1 + 1); E.cvt(a0 + 3, a1 + 2, a1 + 3)
    E.salu(f"s_lshl_b32 s{sT0}, s{sHH}, 7")
    E.salu(f"s_sub_u32 s{sT0}, 64, s{sT0}")
    E.valu("v_add_u32", aOs[0], f"s{sT0}", aOk[0])
    E.valu("v_add_u32", aOs[1], f"s{sT0}", aOk[1])
    E.valu("v_lshlrev_b32", TM[1], "4", L)
    E.salu(f"s_mul_i32 s{sT0}, s{sW}, 6144")
    E.salu(f"s_add_u32 s{sT0}, s{sT0}, {EXB}")
    E.valu("v_add_u32", aEw, f"s{sT0}", TM[1])
    E.salu(f"s_xor_b32 s{sT0}, s{sW}, 2")
    E.salu(f"s_mul_i32 s{sT0}, s{sT0}, 6144")
    E.salu(f"s_add_u32 s{sT0}, s{sT0}, {EXB}")
    E.valu("v_add_u32", aEr, f"s{sT0}", TM[1])
    E.salu(f"s_lshl_b32 s{sT0}, s{sBR}, 4")
    E.salu(f"s_add_u32 s{sT0}, s{sT0}, s{sB}")
    E.salu(f"s_lshl_b32 s{sT0}, s{sT0}, 3")
    E.salu(f"s_add_u32 s{sT0}, s{sT0}, s{sP}")
    E.salu(f"s_mul_i32 s{sT0}, s{sT0}, {PART}")
    E.salu(f"s_mul_i32 s{sT1}, s{sW}, 3072")
    E.salu(f"s_add_u32 s{sT0}, s{sT0}, s{sT1}")
    E.valu("v_add_u32", vSt, f"s{sT0}", TM[1])
    E.salu(f"s_mul_i32 s{sCH}, s{sROT}, 12288")

    OT = [156, 180]
    def oacc(t, rt): return qf(t >> 1, rt) if (t & 1) == 0 else OT[(t >> 1) & 1] + 4 * rt
    for t in range(16):
        for s in range(3):
            gi = len(groups2)
            reads = [tr(ring(gi) + 2 * i, aV, (2 * s + i) * 8448 + 32 * t) for i in range(2)]
            mfmas = [mf(oacc(t, rt), ring(gi), pf(s, rt), None if s == 0 else oacc(t, rt)) for rt in range(3)]
            fill = []
            if s == 2 and (t & 1) and cfg.dump != 'O32':
                for rt in range(3):
                    a0 = oacc(t - 1, rt); a1 = oacc(t, rt)
                    due = min(3 * (t + 4), 48 + 4 * (t >> 1))
                    fill += [F(cv(a0, a0, a0 + 1), gi, due=due), F(cv(a0 + 1, a0 + 2, a0 + 3), gi, due=due),
                             F(cv(a0 + 2, a1, a1 + 1), gi, due=due), F(cv(a0 + 3, a1 + 2, a1 + 3), gi, due=due)]
            if gi == 1:
                for rt in range(3):
                    fill.append(F((lambda rt=rt: E.valu("v_rcp_f32", MX[rt], SUM + 4 * rt, kind="trans")), gi, cost=2))
            groups2.append(Grp(reads, mfmas, fill=fill))
    softmax_rt(0)
    softmax_rt(1)
    E.barrier()
    for gi in range(cfg.LA):
        for rdf in groups2[gi].reads: rdf()
    softmax_rt(2)
    for s in range(3):
        for rt in range(3):
            E.mfma(SUM + 4 * rt, ONES, pf(s, rt), None if s == 0 else SUM + 4 * rt)
    if cfg.dump == 'P':
        dump_regs(E, list(range(216)), 'P')
        for _ in range(17, 33): E.barrier()
        return
    if cfg.dump == 'O':
        groups2.append(Grp([], [], barrier=True))
        stream(E, groups2, cfg, nxt=cfg.LA)
        dump_regs(E, list(range(216)), 'O')
        for _ in range(18, 33): E.barrier()
        return
    def pacc(c, u, rt): return 24 * (4 * (c & 1) + u) + 12 + 4 * rt
    def send_fill(c, ready):
        fl = []
        if cfg.noexch: return fl
        for u in (2, 3):
            for rt in range(3):
                a = pacc(c, u, rt)
                for k in range(4):
                    fl.append(F((lambda a=a + k, rt=rt: E.valu("v_mul_f32", a, a, MX[rt])), ready))
                fl.append(F((lambda a=a, o=((u - 2) * 3 + rt) * 1024: E.ds_write("ds_write_b128", aEw, a, 4, o)), ready, dsw=True))
        return fl
    def recv_fill(c, ready):
        fl = []
        if cfg.noexch: return fl
        for u in (2, 3):
            for rt in range(3):
                fl.append(F(rd128(pacc(c, u, rt), aEr, ((u - 2) * 3 + rt) * 1024), -1))
        for rt in range(3):
            for u in (0, 1):
                a = pacc(c, u, rt); b = pacc(c, u + 2, rt)
                for k in range(4):
                    fl.append(F((lambda a=a + k, b=b + k, rt=rt: E.valu("v_fma_f32", a, a, MX[rt], b)), ready))
            a0 = pacc(c, 0, rt); a1 = pacc(c, 1, rt)
            fl += [F(cv(a0, a0, a0 + 1), ready), F(cv(a0 + 1, a0 + 2, a0 + 3), ready),
                   F(cv(a0 + 2, a1, a1 + 1), ready), F(cv(a0 + 3, a1 + 2, a1 + 3), ready)]
            def st(a0=a0, rt=rt):
                E.ins(f"buffer_store_dwordx4 {vr(a0,4)}, v{vSt}, s[{sWS}:{sWS+3}], s{sCH} offen offset:{rt*1024}",
                      "vmem", rd=R(a0, 4) + [vSt], wide=True)
            fl.append(F(st, ready))
        def adv():
            E.salu(f"s_add_u32 s{sCH}, s{sCH}, 12288")
            E.salu(f"s_cmp_ge_u32 s{sCH}, {PART}")
            E.salu(f"s_cselect_b32 s{sCH}, 0, s{sCH}")
        fl.append(F(adv, ready, due=48 + 32 * (c + 2)))
        return fl
    stage_end = {}
    for j in range(14):
        c, kh = j >> 1, j & 1
        T = T_O[j % 4]
        hi = 1 if T >= 67584 else 0
        toff = T - 67584 * hi
        order = [(ks, u) for ks in range(4) for u in range(4)] if kh == 0 else \
                [(ks, u) for ks in range(4) for u in (2, 3)] + [(ks, u) for ks in range(4) for u in (0, 1)]
        for n_, (ks, u) in enumerate(order):
            gi = len(groups2)
            blk, sp = ks >> 1, ks & 1
            addr = aOk[hi] if u < 2 else aOs[hi]
            reads = [tr(ring(gi) + 2 * i, addr, toff + blk * 8448 + (4 * sp + 2 * i) * 128 + 32 * (u & 1)) for i in range(2)]
            s = 4 * kh + ks
            mfmas = [mf(pacc(c, u, rt), ring(gi), qf(s, rt), None if s == 0 else pacc(c, u, rt)) for rt in range(3)]
            after = []
            if n_ == 0 and j >= 2:
                if kh == 0: after = send_fill(c - 1, gi - 9)
                elif c >= 1: after = recv_fill(c - 1, gi - 17)
            groups2.append(Grp(reads, mfmas, barrier=(n_ == 0), after=after))
    gi = len(groups2)
    groups2.append(Grp([], [], barrier=True, after=send_fill(6, gi - 9)))
    groups2.append(Grp([], [], barrier=True, after=recv_fill(6, gi - 1)))
    stream(E, groups2, cfg, nxt=cfg.LA)

def loader(E, cfg):
    L = vL
    vW, vX, vKV, vVV, vO, aKw, aVw, vT0, vT1, t1, t2 = 200, 201, 202, 203, 204, 205, 206, 207, 208, 209, 210
    if cfg.lprio: E.salu(f"s_setprio {cfg.lprio}")
    E.salu(f"s_sub_u32 s{sLW}, s{sW}, 4", srd=[sW])
    lw = sLW
    E.valu("v_lshlrev_b32", t1, "4", L)
    E.salu(f"s_lshl_b32 s{sT0}, s{sP}, 10")
    E.salu(f"s_lshl_b32 s{sT1}, s{lw}, 16")
    E.salu(f"s_add_u32 s{sT0}, s{sT0}, s{sT1}")
    E.valu("v_add_u32", vW, f"s{sT0}", t1)
    E.salu(f"s_lshr_b32 s{sT2}, s{lw}, 1")
    E.salu(f"s_and_b32 s{sT3}, s{lw}, 1")
    E.salu(f"s_mul_i32 s{sMQ}, s{sT2}, 16896")
    E.salu(f"s_mul_i32 s{sT0}, s{sT3}, 4224")
    E.salu(f"s_add_u32 s{sMQ}, s{sMQ}, s{sT0}")
    E.salu(f"s_mul_i32 s{sROW}, s{sROT}, {2*262144}")
    E.salu(f"s_mul_i32 s{sXK}, s{sROT}, 128")
    E.salu(f"s_mul_i32 s{sMX}, s{lw}, 3072")
    E.salu(f"s_mul_i32 s{sT0}, s{sB}, 86016")
    E.salu(f"s_mul_i32 s{sT1}, s{sT3}, {48*896}")
    E.salu(f"s_add_u32 s{sT0}, s{sT0}, s{sT1}")
    E.salu(f"s_lshl_b32 s{sT1}, s{sT2}, 6")
    E.salu(f"s_add_u32 s{sT0}, s{sT0}, s{sT1}")
    E.valu("v_and_b32", t2, "15", L)
    E.valu("v_mul_u32_u24", vX, "896", t2)
    E.valu("v_and_b32", t2, "48", L)
    E.valu("v_add_u32", vX, vX, t2)
    E.valu("v_add_u32", vX, f"s{sT0}", vX)

    nb = [0]
    def stamp(which):
        if not cfg.prof: return
        E.raw(f"    s_memtime s[{sTM+2*which}:{sTM+2*which+1}]")
    def bar():
        if cfg.prof:
            stamp(0)
            E.raw("    s_waitcnt lgkmcnt(0)"); E.lgkm = []
            E.ins(f"v_writelane_b32 v{vT0}, s{sTM}, {nb[0]}", "valu", wr=[vT0])
        E.barrier()
        if cfg.prof:
            stamp(1)
            E.raw("    s_waitcnt lgkmcnt(0)"); E.lgkm = []
            E.ins(f"v_writelane_b32 v{vT1}, s{sTM+2}, {nb[0]}", "valu", wr=[vT1])
        nb[0] += 1
    if cfg.prof:
        E.valu("v_mov_b32", vT0, "0"); E.valu("v_mov_b32", vT1, "0")
        E.raw(f"    s_memtime s[{sTM}:{sTM+1}]")
        E.raw(f"    s_memrealtime s[{sTM+2}:{sTM+3}]")
        E.raw("    s_waitcnt lgkmcnt(0)")
        E.ins(f"v_writelane_b32 v{vT0}, s{sTM}, 62", "valu", wr=[vT0])
        E.ins(f"v_writelane_b32 v{vT1}, s{sTM+2}, 62", "valu", wr=[vT1])

    def dma(srd, voff, m0expr, soffexpr, tag):
        if cfg.noload: return
        E.salu(f"s_add_u32 m0, {m0expr}", swr=["m0"])
        E.salu(f"s_add_u32 s{sT0}, {soffexpr}")
        E.ins(f"buffer_load_dwordx4 v{voff}, s[{srd}:{srd+3}], s{sT0} offen lds", "dma", rd=[voff], tag=tag)
    def ldW(s):
        for i in range(8):
            dma(sWQ, vW, f"s{sMQ}, {S_Q[s % 4] + (8 * (i >> 2) + (i & 3)) * 1056}", f"s{sROW}, {i * 8192}", ("W", s))
        E.salu(f"s_add_u32 s{sROW}, s{sROW}, 262144")
        E.salu(f"s_cmp_ge_u32 s{sROW}, {14*262144}")
        E.salu(f"s_cselect_b32 s{sROW}, 0, s{sROW}")
    def ldX(u):
        for i in range(3):
            dma(sX, vX, f"s{sMX}, {X_Q[u & 1] + i * 1024}", f"s{sXK}, {i * 14336}", ("X", u))
        E.salu(f"s_add_u32 s{sXK}, s{sXK}, 128")
        E.salu(f"s_cmp_ge_u32 s{sXK}, 896")
        E.salu(f"s_cselect_b32 s{sXK}, 0, s{sXK}")
    ldX(0); ldW(0)
    E.salu(f"s_lshl_b32 s{sT1}, s{sB}, 3")
    E.salu(f"s_add_u32 s{sT1}, s{sT1}, s{sP}")
    E.salu(f"s_mul_i32 s{sT1}, s{sT1}, 98304")
    E.salu(f"s_lshl_b32 s{sT0}, s{lw}, 13")
    E.salu(f"s_add_u32 s{sT0}, s{sT0}, s{sT1}")
    E.valu("v_add_u32", vKV, f"s{sT0}", t1)
    E.salu(f"s_lshl_b32 s{sT0}, s{lw}, 11")
    E.salu(f"s_add_u32 s{sT0}, s{sT0}, s{sT1}")
    E.valu("v_add_u32", vVV, f"s{sT0}", t1)
    E.valu("v_and_b32", t1, "0x1f0", t1)
    E.valu("v_lshrrev_b32", t2, "5", L)
    E.valu("v_mul_u32_u24", aKw, "528", t2)
    E.valu("v_add_u32", aKw, aKw, t1)
    E.salu(f"s_mul_i32 s{sMO}, s{lw}, 8448")
    E.salu(f"s_add_u32 s{sT0}, s{sMO}, {KB}")
    E.valu("v_add_u32", aKw, f"s{sT0}", aKw)
    E.valu("v_mul_u32_u24", aVw, "1056", t2)
    E.valu("v_add_u32", aVw, aVw, t1)
    E.salu(f"s_mul_i32 s{sT0}, s{sT3}, 4224")
    E.salu(f"s_lshl_b32 s{sT1}, s{sT2}, 9")
    E.salu(f"s_add_u32 s{sT0}, s{sT0}, s{sT1}")
    E.valu("v_add_u32", aVw, f"s{sT0}", aVw)
    E.salu(f"s_lshl_b32 s{sT0}, s{sP}, 9")
    E.salu(f"s_lshl_b32 s{sT1}, s{sT2}, 8")
    E.salu(f"s_add_u32 s{sT0}, s{sT0}, s{sT1}")
    E.salu(f"s_lshl_b32 s{sT1}, s{sT3}, 6")
    E.salu(f"s_add_u32 s{sT0}, s{sT0}, s{sT1}")
    E.salu(f"s_mul_i32 s{sT0}, s{sT0}, 896")
    E.valu("v_lshrrev_b32", t2, "3", L)
    E.valu("v_mul_u32_u24", vO, "7168", t2)
    E.valu("v_and_b32", t2, "7", L)
    E.valu("v_lshlrev_b32", t2, "4", t2)
    E.valu("v_add_u32", vO, vO, t2)
    E.valu("v_add_u32", vO, f"s{sT0}", vO)
    E.salu(f"s_mul_i32 s{sOC}, s{sROT}, 128")

    kvn = [0]
    def ldKV(n):
        if cfg.noload or cfg.nokv: return
        for _ in range(n):
            j = kvn[0]
            if j >= 48: return
            kvn[0] += 1
            if j < 24:
                off = (j >> 3) * 32768 + (j & 7) * 1024; srd = sK; vo = vKV; tag = ("K", j >> 3)
            else:
                jj = j - 24
                off = (jj >> 1) * 8192 + (jj & 1) * 1024; srd = sV; vo = vVV; tag = ("V", jj)
            E.salu(f"s_mov_b32 s{sT1}, {off & ~4095}")
            E.ins(f"buffer_load_dwordx4 {vr(4*j,4)}, v{vo}, s[{srd}:{srd+3}], s{sT1} offen offset:{off & 4095} nt",
                  "vmem", rd=[vo], wr=R(4 * j, 4), tag=tag)
    def wrK(third):
        if cfg.noload or cfg.nokv: return
        for i in range(8):
            E.ds_write("ds_write_b128", aKw, 4 * (8 * third + i), 4, i * 1056)
        if third < 2: E.valu("v_add_u32", aKw, str(SLOT), aKw)
    def wrV(b0, b1):
        if cfg.noload or cfg.nokv: return
        for blk in range(b0, b1):
            for e in range(2):
                E.ds_write("ds_write_b128", aVw, 96 + 4 * (2 * blk + e), 4, (blk - b0) * 8448 + e * 2112)
        E.valu("v_add_u32", aVw, str((b1 - b0) * 8448), aVw)
    def ldO(j):
        kh = j & 1
        for i in range(8):
            dma(sWO, vO, f"s{sMO}, {T_O[j % 4] + i * 1056}", f"s{sOC}, {(128 * kh + i) * 896}", ("O", j))
        if kh:
            E.salu(f"s_add_u32 s{sOC}, s{sOC}, 128")
            E.salu(f"s_cmp_ge_u32 s{sOC}, 896")
            E.salu(f"s_cselect_b32 s{sOC}, 0, s{sOC}")

    kv = cfg.kv_sched or {-1: 0, 0: 8, 2: 8, 4: 8, 6: 8, 8: 8, 10: 8}
    ldW(1); ldX(1); ldW(2); ldW(3)
    ldKV(kv.get(-1, 0))
    E.wait_vm_tag({("X", 0), ("W", 0)})
    bar()
    ldKV(kv.get(0, 0))
    E.wait_vm_tag({("W", 1)})
    bar()
    for s in range(13):
        if s & 1 and (s + 1) // 2 + 1 <= 6: ldX((s + 1) // 2 + 1)
        if s + 4 <= 13: ldW(s + 4)
        ldKV(kv.get(s + 1, 0))
        if s + 1 >= 11: wrK(s + 1 - 11)
        if s + 2 <= 13: E.wait_vm_tag({("W", s + 2), ("X", (s + 2) // 2)})
        E.wait_lgkm(0)
        bar()
    ldKV(48)
    wrV(0, 7)
    bar()
    ldO(0)
    wrV(7, 12)
    E.wait_lgkm(0)
    bar()
    E.wait_vm_tag({("O", 0)})
    bar()
    ldO(1); ldO(2); ldO(3)
    E.wait_vm_tag({("O", 1)})
    bar()
    for j in range(13):
        if j + 4 <= 13: ldO(j + 4)
        if j + 2 <= 13: E.wait_vm_tag({("O", j + 2)})
        bar()
    bar()
    assert nb[0] == 33
    if cfg.prof:
        E.raw(f"    s_memrealtime s[{sTM+2}:{sTM+3}]")
        E.raw("    s_waitcnt lgkmcnt(0)")
        E.ins(f"v_writelane_b32 v{vT1}, s{sTM+2}, 63", "valu", wr=[vT1])
        E.salu(f"s_lshl_b32 s{sT0}, s2, 2")
        E.salu(f"s_add_u32 s{sT0}, s{sT0}, s{lw}")
        E.salu(f"s_lshl_b32 s{sT0}, s{sT0}, 9")
        E.salu(f"s_add_u32 s{sT0}, s{sT0}, {PROF_OFF}")
        E.valu("v_lshlrev_b32", t1, "2", L)
        E.ins(f"buffer_store_dword v{vT0}, v{t1}, s[{sWS}:{sWS+3}], s{sT0} offen", "vmem", rd=[vT0, t1])
        E.ins(f"buffer_store_dword v{vT1}, v{t1}, s[{sWS}:{sWS+3}], s{sT0} offen offset:256", "vmem", rd=[vT1, t1])

def reduce_kernel(E):
    E.salu("s_cmp_ge_u32 s2, 672")
    E.raw("    s_cbranch_scc1 L_exit2")
    E.raw("    s_load_dwordx2 s[4:5], s[0:1], 80")
    E.raw("    s_load_dwordx2 s[6:7], s[0:1], 96")
    E.salu("s_mul_i32 s16, s2, 3121")
    E.salu("s_lshr_b32 s16, s16, 16")
    E.salu("s_mul_i32 s17, s16, 21")
    E.salu("s_sub_u32 s17, s2, s17")
    E.valu("v_lshrrev_b32", 1, "6", 0)
    E.salu("s_mul_i32 s18, s16, %d" % (8 * PART))
    E.ins("v_readfirstlane_b32 s19, v1", "rfl", rd=[1], swr=[19])
    E.salu("s_lshl_b32 s20, s17, 12")
    E.salu("s_add_u32 s18, s18, s20")
    E.valu("v_lshlrev_b32", 2, "4", 0)
    E.raw("    s_waitcnt lgkmcnt(0)")
    E.salu("s_mov_b32 s8, s6"); E.salu("s_mov_b32 s9, s7"); E.salu("s_mov_b32 s10, 0x10000000"); E.salu("s_mov_b32 s11, 0x00020000")
    E.salu("s_mov_b32 s12, s4"); E.salu("s_mov_b32 s13, s5"); E.salu("s_mov_b32 s14, 2752512"); E.salu("s_mov_b32 s15, 0x00020000")
    for p in range(8):
        E.ins(f"buffer_load_dwordx4 {vr(8+4*p,4)}, v2, s[8:11], s18 offen", "vmem", rd=[2], wr=R(8+4*p, 4))
        if p < 7: E.salu(f"s_add_u32 s18, s18, {PART}")
    E.salu("s_lshl_b32 s20, s17, 2")
    E.salu("s_add_u32 s20, s20, s19", srd=[19])
    E.salu("s_mul_i32 s21, s20, 5462")
    E.salu("s_lshr_b32 s21, s21, 16")
    E.salu("s_mul_i32 s22, s21, 12")
    E.salu("s_sub_u32 s22, s20, s22")
    E.salu("s_cmp_ge_u32 s22, 6")
    E.salu("s_cselect_b32 s23, 1, 0")
    E.salu("s_mul_i32 s24, s23, 6")
    E.salu("s_sub_u32 s24, s22, s24")
    E.salu("s_and_b32 s25, s16, 15")
    E.salu("s_mul_i32 s25, s25, 96")
    E.salu("s_lshl_b32 s24, s24, 4")
    E.salu("s_add_u32 s25, s25, s24")
    E.salu("s_mul_i32 s25, s25, 1792")
    E.salu("s_lshr_b32 s26, s16, 4")
    E.salu("s_mul_i32 s26, s26, 896")
    E.salu("s_add_u32 s25, s25, s26")
    E.salu("s_lshl_b32 s21, s21, 7")
    E.salu("s_add_u32 s25, s25, s21")
    E.salu("s_lshl_b32 s23, s23, 6")
    E.salu("s_add_u32 s25, s25, s23")
    E.valu("v_and_b32", 3, "15", 0)
    E.valu("v_mul_u32_u24", 3, "1792", 3)
    E.valu("v_and_b32", 4, "48", 0)
    E.valu("v_lshrrev_b32", 4, "1", 4)
    E.valu("v_add_u32", 3, 3, 4)
    E.salu("s_mov_b32 s27, 0xffff0000")
    ACC = 40
    for p in range(8):
        for k in range(4):
            src = 8 + 4 * p + k
            if p == 0:
                E.valu("v_lshlrev_b32", ACC + 2 * k, "16", src)
                E.valu("v_and_b32", ACC + 2 * k + 1, "s27", src)
            else:
                E.valu("v_lshlrev_b32", 5, "16", src)
                E.valu("v_and_b32", 6, "s27", src)
                E.valu("v_add_f32", ACC + 2 * k, ACC + 2 * k, 5)
                E.valu("v_add_f32", ACC + 2 * k + 1, ACC + 2 * k + 1, 6)
    for k in range(4):
        E.cvt(48 + k, ACC + 2 * k, ACC + 2 * k + 1)
    E.ins("buffer_store_dwordx2 v[48:49], v3, s[12:15], s25 offen", "vmem", rd=[48, 49, 3])
    E.ins("buffer_store_dwordx2 v[50:51], v3, s[12:15], s25 offen offset:32", "vmem", rd=[50, 51, 3])

def kdesc(name, vgpr, sgpr=102):
    acc = (vgpr + 3) // 4 * 4
    return f""".p2align 6
.amdhsa_kernel {name}
  .amdhsa_next_free_vgpr {vgpr}
  .amdhsa_next_free_sgpr {sgpr}
  .amdhsa_accum_offset {acc}
  .amdhsa_group_segment_fixed_size 0
  .amdhsa_kernarg_size 104
  .amdhsa_user_sgpr_count 2
  .amdhsa_user_sgpr_kernarg_segment_ptr 1
  .amdhsa_system_sgpr_workgroup_id_x 1
.end_amdhsa_kernel
"""

def generate(cfg):
    ref = open(f"cdna_kernels/{NAME}.s.ref").read().split("\n")
    hdr = [l for l in ref if l.startswith(";") and "@launch" not in l and "Override" not in l and "grid=ceil" not in l]
    out = "\n".join(hdr) + "\n"
    if cfg.only != 2: out += f"; @launch kernel={K1} grid=(256,1,1) block=(512,1,1) lds=163840\n"
    if cfg.only != 1: out += f"; @launch kernel={K2} grid=(672,1,1) block=(256,1,1) lds=0\n"
    out += '.amdgcn_target "amdgcn-amd-amdhsa--gfx950"\n.text\n'
    out += f".globl {K1}\n.p2align 8\n.type {K1},@function\n{K1}:\n"
    E = Emit(); prologue(E)
    st = (E.pos, dict(E.lastw), dict(E.sgpr_valu))
    compute(E, cfg)
    E.raw("    s_endpgm")
    E.label("L_loader")
    E.reset(); E.pos, E.lastw, E.sgpr_valu = st[0], dict(st[1]), dict(st[2])
    loader(E, cfg)
    E.label("L_exit")
    E.raw("    s_endpgm")
    out += E.text()
    out += f".globl {K2}\n.p2align 8\n.type {K2},@function\n{K2}:\n"
    E = Emit(); reduce_kernel(E)
    E.label("L_exit2")
    E.raw("    s_endpgm")
    out += E.text()
    out += '.section .rodata,"a"\n' + kdesc(K1, 256) + kdesc(K2, 56)
    return out

if __name__ == "__main__":
    import argparse
    ap = argparse.ArgumentParser()
    ap.add_argument("-o", default=f"cdna_kernels/{NAME}.s")
    ap.add_argument("--prof", action="store_true")
    ap.add_argument("--dump", default=None)
    ap.add_argument("--set", nargs="*", default=[])
    a = ap.parse_args()
    cfg = Cfg(); cfg.prof = a.prof; cfg.dump = a.dump
    for kv in a.set:
        k, v = kv.split("="); assert hasattr(cfg, k), k; setattr(cfg, k, eval(v))
    open(a.o, "w").write(generate(cfg))
```

```python
import sys, os
from collections import deque
sys.path.insert(0, os.path.dirname(os.path.abspath(__file__)))
from asmlib import *

NAME = "concat_heads__mha_block_cached__gqa_block_cached__near_ridge"
K1 = NAME + "_kernel"
K2 = "reduce_kernel"

SLOT = 33792
S_Q = [130048, 0, 62464, 96256]
X_Q = [33792, 46080]
KB = 62464
VB = 0
T_O = [101376, 0, 33792, 67584]
EXB = 135168
PART = 86016
PROF_OFF = 64 << 20
DUMP_OFF = 32 << 20

sX, sWQ, sK, sV, sWO, sWS = 40, 44, 48, 52, 56, 60
sB, sP, sBR, sW, sROT, sHH, sRH, sLW = 64, 65, 66, 67, 68, 69, 70, 71
sT0, sT1, sT2, sT3 = 72, 73, 74, 75
sC = 76
sCH = 77
sMQ, sROW, sXK, sMX, sMO, sOC = 78, 79, 80, 81, 82, 83
sTM = 84

class Cfg:
    LA = 7
    DELAY = 2
    prof = False
    dump = None
    kv_sched = None
    noload = False
    nokv = False
    spread = True
    lprio = 0
    cprio = 0
    noexch = False
    only = 0
    dbg = False
    dbgwg = 0

class Grp:
    def __init__(self, reads, mfmas, barrier=False, after=None, fill=None):
        self.reads = reads; self.mfmas = mfmas; self.barrier = barrier
        self.after = after or []; self.fill = fill or []

class F:
    def __init__(self, fn, ready=-1, cost=1, dsw=False, due=1<<30):
        self.fn = fn; self.ready = ready; self.cost = cost; self.dsw = dsw; self.due = due

RING = 216
def ring(i): return RING + 4 * (i % 8)

def stream(E, groups, cfg, nxt=0, base=0):
    side = deque(); fill = deque()
    last_emit = [-100]
    n = len(groups)
    def try_queue(i, force=False):
        nonlocal nxt
        while nxt < n and nxt <= i + cfg.LA:
            H = groups[nxt]
            if H.barrier:
                must = force or nxt <= i
                if must:
                    while side: side.popleft()()
                    while any(f.dsw for f in fill): fill.popleft().fn()
                elif side or any(f.dsw for f in fill) or i < last_emit[0] + cfg.DELAY:
                    break
                E.wait_lgkm(0); E.barrier(); H.barrier = False
                fill.extend(H.after)
            side.extend(H.reads); nxt += 1
    for i, G in enumerate(groups):
        if not G.mfmas: continue
        try_queue(i)
        assert nxt > i
        while any(f.due <= i for f in fill):
            f = fill.popleft(); assert f.ready < i; f.fn()
        fill.extend(G.fill)
        while any(r in side for r in G.reads): side.popleft()()
        for mf in G.mfmas:
            mf()
            budget = 2
            nrd = 1 if (cfg.spread and len(side) <= 3) else 2
            while budget > 0 and side and nrd > 0:
                side.popleft()(); budget -= 1; last_emit[0] = i; nrd -= 1
            while budget > 0 and fill and fill[0].ready < i:
                f = fill.popleft(); f.fn(); budget -= f.cost
                if f.dsw: last_emit[0] = i
    try_queue(n + 100, force=True)
    while side: side.popleft()()
    while fill: fill.popleft().fn()

def dump_regs(E, regs, tag):
    E.comment("dump " + tag)
    E.wait_lgkm(0)
    E.nop(16)
    E.salu(f"s_lshl_b32 s{sT0}, s2, 2", swr=[sT0])
    E.salu(f"s_add_u32 s{sT0}, s{sT0}, s{sW}", swr=[sT0])
    E.salu(f"s_mul_i32 s{sT0}, s{sT0}, {256*256}", swr=[sT0])
    E.salu(f"s_add_u32 s{sT0}, s{sT0}, {DUMP_OFF}", swr=[sT0])
    E.valu("v_lshlrev_b32", 254, "2", 255)
    for k, r in enumerate(regs):
        E.ins(f"buffer_store_dword v{r}, v254, s[{sWS}:{sWS+3}], s{sT0} offen", "vmem", rd=[r, 254])
        E.salu(f"s_add_u32 s{sT0}, s{sT0}, 256", swr=[sT0])
        if k % 32 == 31: E.wait_vm(0)
    E.wait_vm(0)

def prologue(E):
    E.salu("s_cmp_ge_u32 s2, 256")
    E.raw("    s_cbranch_scc1 L_exit")
    E.raw("    s_load_dwordx16 s[16:31], s[0:1], 0")
    E.raw("    s_load_dwordx4 s[32:35], s[0:1], 64")
    E.raw("    s_load_dwordx2 s[36:37], s[0:1], 96")
    E.valu("v_lshrrev_b32", 1, "6", 0)
    E.valu("v_and_b32", 255, "63", 0)
    E.salu(f"s_and_b32 s{sT0}, s2, 7")
    E.salu(f"s_lshr_b32 s{sBR}, s{sT0}, 2")
    E.salu(f"s_and_b32 s{sT0}, s{sT0}, 3")
    E.salu(f"s_lshr_b32 s{sT1}, s2, 3")
    E.salu(f"s_and_b32 s{sB}, s{sT1}, 15")
    E.salu(f"s_lshr_b32 s{sT1}, s{sT1}, 4")
    E.salu(f"s_lshl_b32 s{sP}, s{sT0}, 1")
    E.salu(f"s_add_u32 s{sP}, s{sP}, s{sT1}")
    E.ins(f"v_readfirstlane_b32 s{sW}, v1", "rfl", rd=[1], swr=[sW])
    E.salu(f"s_mul_i32 s{sT1}, s{sT1}, 3")
    E.salu(f"s_add_u32 s{sROT}, s{sB}, s{sT1}")
    for _ in range(2):
        E.salu(f"s_sub_u32 s{sT0}, s{sROT}, 7")
        E.salu(f"s_cmp_ge_u32 s{sROT}, 7")
        E.salu(f"s_cselect_b32 s{sROT}, s{sT0}, s{sROT}")
    E.raw("    s_waitcnt lgkmcnt(0)")
    E.salu(f"s_cmp_eq_u32 s{sBR}, 0")
    for srd, a, b, nrec in ((sX, 16, 26, 1376256), (sK, 18, 28, 12582912), (sV, 20, 30, 12582912),
                            (sWQ, 22, 32, 3670016), (sWO, 24, 34, 3670016)):
        E.salu(f"s_cselect_b32 s{srd}, s{a}, s{b}")
        E.salu(f"s_cselect_b32 s{srd+1}, s{a+1}, s{b+1}")
        E.salu(f"s_mov_b32 s{srd+2}, {nrec}")
        E.salu(f"s_mov_b32 s{srd+3}, 0x00020000")
    E.salu(f"s_mov_b32 s{sWS}, s36")
    E.salu(f"s_mov_b32 s{sWS+1}, s37")
    E.salu(f"s_mov_b32 s{sWS+2}, 0x10000000")
    E.salu(f"s_mov_b32 s{sWS+3}, 0x00020000")
    E.salu(f"s_cmp_ge_u32 s{sW}, 4", srd=[sW])
    E.raw("    s_cbranch_scc1 L_loader")

aW = [248, 249, 250, 251]; aX = 252; aK = 253; aV = 254; vL = 255
XF = 192

def compute(E, cfg):
    L = vL
    if cfg.cprio: E.salu(f"s_setprio {cfg.cprio}")
    E.salu(f"s_lshr_b32 s{sHH}, s{sW}, 1", srd=[sW])
    E.salu(f"s_and_b32 s{sRH}, s{sW}, 1", srd=[sW])
    E.salu(f"s_mov_b32 s{sC}, 0x3db8aa3b")
    m, g, r, c4, btr, t1, t2 = 1, 2, 3, 4, 5, 6, 7
    E.valu("v_and_b32", m, "15", L)
    E.valu("v_lshrrev_b32", g, "4", L)
    E.valu("v_lshrrev_b32", r, "2", m)
    E.valu("v_and_b32", c4, "3", m)
    E.valu("v_and_b32", t1, "1", g)
    E.valu("v_lshlrev_b32", t1, "2", t1)
    E.valu("v_add_u32", t1, t1, r)
    E.valu("v_mul_u32_u24", btr, "1056", t1)
    E.valu("v_lshlrev_b32", t1, "3", c4)
    E.valu("v_add_u32", btr, btr, t1)
    E.valu("v_lshrrev_b32", t2, "1", g)
    E.valu("v_mul_u32_u24", t1, "16896", t2)
    E.valu("v_add_u32", t1, t1, btr)
    E.salu(f"s_lshl_b32 s{sT0}, s{sHH}, 9")
    for k in range(4):
        E.salu(f"s_add_u32 s{sT1}, s{sT0}, {S_Q[k]}")
        E.valu("v_add_u32", aW[k], f"s{sT1}", t1)
    E.salu(f"s_mul_i32 s{sT0}, s{sRH}, 3072")
    E.valu("v_lshlrev_b32", t1, "4", L)
    E.valu("v_add_u32", aX, f"s{sT0}", t1)
    E.salu(f"s_mul_i32 s{sT0}, s{sHH}, {96*528}")
    E.salu(f"s_add_u32 s{sT0}, s{sT0}, {KB}")
    E.valu("v_mul_u32_u24", t1, "528", m)
    E.valu("v_lshlrev_b32", aK, "3", g)
    E.valu("v_add_u32", aK, aK, t1)
    E.valu("v_add_u32", aK, f"s{sT0}", aK)
    E.salu(f"s_mul_i32 s{sT0}, s{sHH}, 50688")
    E.valu("v_lshlrev_b32", t1, "9", t2)
    E.valu("v_add_u32", t1, t1, btr)
    E.valu("v_add_u32", aV, f"s{sT0}", t1)

    def acc(t, rt): return (3 * t + rt) * 4
    def qf(s, rt): return 24 * s + 4 * rt
    def sacc(kt, rt): return 24 * kt + 12 + 4 * rt
    def tr(d, addr, off): return lambda: E.ds_read("ds_read_b64_tr_b16", d, 2, addr, off)
    def rd64(d, addr, off): return lambda: E.ds_read("ds_read_b64", d, 2, addr, off)
    def rd128(d, addr, off): return lambda: E.ds_read("ds_read_b128", d, 4, addr, off)
    def mf(d, a, b, c): return lambda: E.mfma(d, a, b, c)
    def cv(d, a, b): return lambda: E.cvt(d, a, b)

    groups = []
    for s in range(14):
        xs = XF + 12 * (s & 1)
        for t in range(16):
            gi = len(groups)
            reads = []
            if t == 0:
                reads += [rd128(xs + 4 * rt, aX, X_Q[(s >> 1) & 1] + (s & 1) * 6144 + rt * 1024) for rt in range(3)]
            reads += [tr(ring(gi) + 2 * i, aW[s % 4], i * 8448 + 32 * t) for i in range(2)]
            mfmas = [mf(acc(t, rt), ring(gi), xs + 4 * rt, None if s == 0 else acc(t, rt)) for rt in range(3)]
            fill = []
            if s == 13 and (t & 1) and cfg.dump != 'Q':
                sq = t >> 1
                for rt in range(3):
                    a0 = acc(t - 1, rt); a1 = acc(t, rt)
                    due = 224 + sq
                    fill += [F(cv(a0, a0, a0 + 1), gi, due=due), F(cv(a0 + 1, a0 + 2, a0 + 3), gi, due=due),
                             F(cv(a0 + 2, a1, a1 + 1), gi, due=due), F(cv(a0 + 3, a1 + 2, a1 + 3), gi, due=due)]
            groups.append(Grp(reads, mfmas, barrier=(t == 0), fill=fill))
    MX = [192, 193, 194]; TM = [195, 196, 197]
    if cfg.dump == 'Q':
        groups.append(Grp([], [], barrier=True))
        stream(E, groups, cfg)
        dump_regs(E, list(range(192)), 'Q')
        for _ in range(15, 33): E.barrier()
        return
    for kt in range(6):
        for s in range(8):
            gi = len(groups)
            reads = [rd64(ring(gi) + 2 * i, aK, kt * 8448 + 64 * s + 32 * i) for i in range(2)]
            mfmas = [mf(sacc(kt, rt), ring(gi), qf(s, rt), None if s == 0 else sacc(kt, rt)) for rt in range(3)]
            fill = []
            if s == 7:
                for rt in range(3):
                    a = sacc(kt, rt)
                    if kt == 0:
                        fill.append(F((lambda a=a, rt=rt: E.valu("v_max3_f32", MX[rt], a, a + 1, a + 2)), gi))
                        fill.append(F((lambda a=a, rt=rt: E.valu("v_max_f32", MX[rt], MX[rt], a + 3)), gi))
                    else:
                        fill.append(F((lambda a=a, rt=rt: E.valu("v_max3_f32", MX[rt], MX[rt], a, a + 1)), gi))
                        fill.append(F((lambda a=a, rt=rt: E.valu("v_max3_f32", MX[rt], MX[rt], a + 2, a + 3)), gi))
            groups.append(Grp(reads, mfmas, barrier=(kt == 0 and s == 0), fill=fill))
    groups.append(Grp([], [], barrier=True))
    stream(E, groups, cfg)
    if cfg.dump == 'S':
        dump_regs(E, list(range(200)), 'S')
        for _ in range(16, 33): E.barrier()
        return
    for op in ("v_permlane32_swap_b32", "v_permlane16_swap_b32"):
        for rt in range(3): E.valu("v_mov_b32", TM[rt], MX[rt])
        for rt in range(3):
            E.ins(f"{op} v{MX[rt]}, v{TM[rt]}", "perm", rd=[MX[rt], TM[rt]], wr=[MX[rt], TM[rt]])
        for rt in range(3): E.valu("v_max_f32", MX[rt], MX[rt], TM[rt])
    for rt in range(3): E.valu("v_mul_f32", MX[rt], f"s{sC}", MX[rt])
    ONES = 200; SUM = 204
    for k in range(4): E.valu("v_mov_b32", ONES + k, "0x3f803f80")
    aOk, aOs = [248, 249], [250, 251]
    aEw, aEr, vSt = 252, 253, 198
    E.valu("v_lshrrev_b32", TM[0], "5", L)
    E.valu("v_mul_u32_u24", TM[0], "384", TM[0])
    E.valu("v_sub_u32", TM[0], aV, TM[0])
    E.salu(f"s_mul_i32 s{sT0}, s{sHH}, {50688 - 16896 - 64}")
    E.valu("v_subrev_u32", aOk[0], f"s{sT0}", TM[0])
    E.valu("v_add_u32", aOk[1], "67584", aOk[0])
    groups2 = []
    def pf(s, rt): return sacc(2 * s, rt)
    def softmax_rt(rt):
        for kt in range(6):
            for k in range(4):
                a = sacc(kt, rt) + k
                E.valu("v_fma_f32", a, a, f"s{sC}", f"-v{MX[rt]}")
            for k in range(4):
                a = sacc(kt, rt) + k
                E.valu("v_exp_f32", a, a, kind="trans")
            if kt & 1:
                a0 = sacc(kt - 1, rt); a1 = sacc(kt, rt)
                E.cvt(a0, a0, a0 + 1); E.cvt(a0 + 1, a0 + 2, a0 + 3)
                E.cvt(a0 + 2, a1, a1 + 1); E.cvt(a0 + 3, a1 + 2, a1 + 3)
    E.salu(f"s_lshl_b32 s{sT0}, s{sHH}, 7")
    E.salu(f"s_sub_u32 s{sT0}, 64, s{sT0}")
    E.valu("v_add_u32", aOs[0], f"s{sT0}", aOk[0])
    E.valu("v_add_u32", aOs[1], f"s{sT0}", aOk[1])
    E.valu("v_lshlrev_b32", TM[1], "4", L)
    E.salu(f"s_mul_i32 s{sT0}, s{sW}, 6144")
    E.salu(f"s_add_u32 s{sT0}, s{sT0}, {EXB}")
    E.valu("v_add_u32", aEw, f"s{sT0}", TM[1])
    E.salu(f"s_xor_b32 s{sT0}, s{sW}, 2")
    E.salu(f"s_mul_i32 s{sT0}, s{sT0}, 6144")
    E.salu(f"s_add_u32 s{sT0}, s{sT0}, {EXB}")
    E.valu("v_add_u32", aEr, f"s{sT0}", TM[1])
    E.salu(f"s_lshl_b32 s{sT0}, s{sBR}, 4")
    E.salu(f"s_add_u32 s{sT0}, s{sT0}, s{sB}")
    E.salu(f"s_lshl_b32 s{sT0}, s{sT0}, 3")
    E.salu(f"s_add_u32 s{sT0}, s{sT0}, s{sP}")
    E.salu(f"s_mul_i32 s{sT0}, s{sT0}, {PART}")
    E.salu(f"s_mul_i32 s{sT1}, s{sW}, 3072")
    E.salu(f"s_add_u32 s{sT0}, s{sT0}, s{sT1}")
    E.valu("v_add_u32", vSt, f"s{sT0}", TM[1])
    E.salu(f"s_mul_i32 s{sCH}, s{sROT}, 12288")

    OT = [156, 180]
    def oacc(t, rt): return qf(t >> 1, rt) if (t & 1) == 0 else OT[(t >> 1) & 1] + 4 * rt
    for t in range(16):
        for s in range(3):
            gi = len(groups2)
            reads = [tr(ring(gi) + 2 * i, aV, (2 * s + i) * 8448 + 32 * t) for i in range(2)]
            mfmas = [mf(oacc(t, rt), ring(gi), pf(s, rt), None if s == 0 else oacc(t, rt)) for rt in range(3)]
            fill = []
            if s == 2 and (t & 1) and cfg.dump != 'O32':
                for rt in range(3):
                    a0 = oacc(t - 1, rt); a1 = oacc(t, rt)
                    due = min(3 * (t + 4), 48 + 4 * (t >> 1))
                    fill += [F(cv(a0, a0, a0 + 1), gi, due=due), F(cv(a0 + 1, a0 + 2, a0 + 3), gi, due=due),
                             F(cv(a0 + 2, a1, a1 + 1), gi, due=due), F(cv(a0 + 3, a1 + 2, a1 + 3), gi, due=due)]
            if gi == 1:
                for rt in range(3):
                    fill.append(F((lambda rt=rt: E.valu("v_rcp_f32", MX[rt], SUM + 4 * rt, kind="trans")), gi, cost=2))
            groups2.append(Grp(reads, mfmas, fill=fill))
    softmax_rt(0)
    softmax_rt(1)
    E.barrier()
    for gi in range(cfg.LA):
        for rdf in groups2[gi].reads: rdf()
    softmax_rt(2)
    for s in range(3):
        for rt in range(3):
            E.mfma(SUM + 4 * rt, ONES, pf(s, rt), None if s == 0 else SUM + 4 * rt)
    if cfg.dump == 'P':
        dump_regs(E, list(range(216)), 'P')
        for _ in range(17, 33): E.barrier()
        return
    if cfg.dump == 'O':
        groups2.append(Grp([], [], barrier=True))
        stream(E, groups2, cfg, nxt=cfg.LA)
        dump_regs(E, list(range(216)), 'O')
        for _ in range(18, 33): E.barrier()
        return
    def pacc(c, u, rt): return 24 * (4 * (c & 1) + u) + 12 + 4 * rt
    def send_fill(c, ready):
        fl = []
        if cfg.noexch: return fl
        for u in (2, 3):
            for rt in range(3):
                a = pacc(c, u, rt)
                for k in range(4):
                    fl.append(F((lambda a=a + k, rt=rt: E.valu("v_mul_f32", a, a, MX[rt])), ready))
                fl.append(F((lambda a=a, o=((u - 2) * 3 + rt) * 1024: E.ds_write("ds_write_b128", aEw, a, 4, o)), ready, dsw=True))
        return fl
    def recv_fill(c, ready):
        fl = []
        if cfg.noexch: return fl
        for u in (2, 3):
            for rt in range(3):
                fl.append(F(rd128(pacc(c, u, rt), aEr, ((u - 2) * 3 + rt) * 1024), -1))
        for rt in range(3):
            for u in (0, 1):
                a = pacc(c, u, rt); b = pacc(c, u + 2, rt)
                for k in range(4):
                    fl.append(F((lambda a=a + k, b=b + k, rt=rt: E.valu("v_fma_f32", a, a, MX[rt], b)), ready))
            a0 = pacc(c, 0, rt); a1 = pacc(c, 1, rt)
            fl += [F(cv(a0, a0, a0 + 1), ready), F(cv(a0 + 1, a0 + 2, a0 + 3), ready),
                   F(cv(a0 + 2, a1, a1 + 1), ready), F(cv(a0 + 3, a1 + 2, a1 + 3), ready)]
            def st(a0=a0, rt=rt):
                E.ins(f"buffer_store_dwordx4 {vr(a0,4)}, v{vSt}, s[{sWS}:{sWS+3}], s{sCH} offen offset:{rt*1024}",
                      "vmem", rd=R(a0, 4) + [vSt], wide=True)
            fl.append(F(st, ready))
        def adv():
            E.salu(f"s_add_u32 s{sCH}, s{sCH}, 12288")
            E.salu(f"s_cmp_ge_u32 s{sCH}, {PART}")
            E.salu(f"s_cselect_b32 s{sCH}, 0, s{sCH}")
        fl.append(F(adv, ready, due=48 + 32 * (c + 2)))
        return fl
    stage_end = {}
    for j in range(14):
        c, kh = j >> 1, j & 1
        T = T_O[j % 4]
        hi = 1 if T >= 67584 else 0
        toff = T - 67584 * hi
        order = [(ks, u) for ks in range(4) for u in range(4)] if kh == 0 else \
                [(ks, u) for ks in range(4) for u in (2, 3)] + [(ks, u) for ks in range(4) for u in (0, 1)]
        for n_, (ks, u) in enumerate(order):
            gi = len(groups2)
            blk, sp = ks >> 1, ks & 1
            addr = aOk[hi] if u < 2 else aOs[hi]
            reads = [tr(ring(gi) + 2 * i, addr, toff + blk * 8448 + (4 * sp + 2 * i) * 128 + 32 * (u & 1)) for i in range(2)]
            s = 4 * kh + ks
            mfmas = [mf(pacc(c, u, rt), ring(gi), qf(s, rt), None if s == 0 else pacc(c, u, rt)) for rt in range(3)]
            after = []
            if n_ == 0 and j >= 2:
                if kh == 0: after = send_fill(c - 1, gi - 9)
                elif c >= 1: after = recv_fill(c - 1, gi - 17)
            groups2.append(Grp(reads, mfmas, barrier=(n_ == 0), after=after))
    gi = len(groups2)
    groups2.append(Grp([], [], barrier=True, after=send_fill(6, gi - 9)))
    groups2.append(Grp([], [], barrier=True, after=recv_fill(6, gi - 1)))
    stream(E, groups2, cfg, nxt=cfg.LA)

def loader(E, cfg):
    L = vL
    vW, vX, vKV, vVV, vO, aKw, aVw, vT0, vT1, t1, t2 = 200, 201, 202, 203, 204, 205, 206, 207, 208, 209, 210
    if cfg.lprio: E.salu(f"s_setprio {cfg.lprio}")
    E.salu(f"s_sub_u32 s{sLW}, s{sW}, 4", srd=[sW])
    lw = sLW
    E.valu("v_lshlrev_b32", t1, "4", L)
    E.salu(f"s_lshl_b32 s{sT0}, s{sP}, 10")
    E.salu(f"s_lshl_b32 s{sT1}, s{lw}, 16")
    E.salu(f"s_add_u32 s{sT0}, s{sT0}, s{sT1}")
    E.valu("v_add_u32", vW, f"s{sT0}", t1)
    E.salu(f"s_lshr_b32 s{sT2}, s{lw}, 1")
    E.salu(f"s_and_b32 s{sT3}, s{lw}, 1")
    E.salu(f"s_mul_i32 s{sMQ}, s{sT2}, 16896")
    E.salu(f"s_mul_i32 s{sT0}, s{sT3}, 4224")
    E.salu(f"s_add_u32 s{sMQ}, s{sMQ}, s{sT0}")
    E.salu(f"s_mul_i32 s{sROW}, s{sROT}, {2*262144}")
    E.salu(f"s_mul_i32 s{sXK}, s{sROT}, 128")
    E.salu(f"s_mul_i32 s{sMX}, s{lw}, 3072")
    E.salu(f"s_mul_i32 s{sT0}, s{sB}, 86016")
    E.salu(f"s_mul_i32 s{sT1}, s{sT3}, {48*896}")
    E.salu(f"s_add_u32 s{sT0}, s{sT0}, s{sT1}")
    E.salu(f"s_lshl_b32 s{sT1}, s{sT2}, 6")
    E.salu(f"s_add_u32 s{sT0}, s{sT0}, s{sT1}")
    E.valu("v_and_b32", t2, "15", L)
    E.valu("v_mul_u32_u24", vX, "896", t2)
    E.valu("v_and_b32", t2, "48", L)
    E.valu("v_add_u32", vX, vX, t2)
    E.valu("v_add_u32", vX, f"s{sT0}", vX)

    nb = [0]
    def stamp(which):
        if not cfg.prof: return
        E.raw(f"    s_memtime s[{sTM+2*which}:{sTM+2*which+1}]")
    def bar():
        if cfg.prof:
            stamp(0)
            E.raw("    s_waitcnt lgkmcnt(0)"); E.lgkm = []
            E.ins(f"v_writelane_b32 v{vT0}, s{sTM}, {nb[0]}", "valu", wr=[vT0])
        E.barrier()
        if cfg.prof:
            stamp(1)
            E.raw("    s_waitcnt lgkmcnt(0)"); E.lgkm = []
            E.ins(f"v_writelane_b32 v{vT1}, s{sTM+2}, {nb[0]}", "valu", wr=[vT1])
        nb[0] += 1
    if cfg.prof:
        E.valu("v_mov_b32", vT0, "0"); E.valu("v_mov_b32", vT1, "0")
        E.raw(f"    s_memtime s[{sTM}:{sTM+1}]")
        E.raw(f"    s_memrealtime s[{sTM+2}:{sTM+3}]")
        E.raw("    s_waitcnt lgkmcnt(0)")
        E.ins(f"v_writelane_b32 v{vT0}, s{sTM}, 62", "valu", wr=[vT0])
        E.ins(f"v_writelane_b32 v{vT1}, s{sTM+2}, 62", "valu", wr=[vT1])

    def dma(srd, voff, m0expr, soffexpr, tag):
        if cfg.noload: return
        E.salu(f"s_add_u32 m0, {m0expr}", swr=["m0"])
        E.salu(f"s_add_u32 s{sT0}, {soffexpr}")
        E.ins(f"buffer_load_dwordx4 v{voff}, s[{srd}:{srd+3}], s{sT0} offen lds", "dma", rd=[voff], tag=tag)
    def ldW(s):
        for i in range(8):
            dma(sWQ, vW, f"s{sMQ}, {S_Q[s % 4] + (8 * (i >> 2) + (i & 3)) * 1056}", f"s{sROW}, {i * 8192}", ("W", s))
        E.salu(f"s_add_u32 s{sROW}, s{sROW}, 262144")
        E.salu(f"s_cmp_ge_u32 s{sROW}, {14*262144}")
        E.salu(f"s_cselect_b32 s{sROW}, 0, s{sROW}")
    def ldX(u):
        for i in range(3):
            dma(sX, vX, f"s{sMX}, {X_Q[u & 1] + i * 1024}", f"s{sXK}, {i * 14336}", ("X", u))
        E.salu(f"s_add_u32 s{sXK}, s{sXK}, 128")
        E.salu(f"s_cmp_ge_u32 s{sXK}, 896")
        E.salu(f"s_cselect_b32 s{sXK}, 0, s{sXK}")
    ldX(0); ldW(0)
    E.salu(f"s_lshl_b32 s{sT1}, s{sB}, 3")
    E.salu(f"s_add_u32 s{sT1}, s{sT1}, s{sP}")
    E.salu(f"s_mul_i32 s{sT1}, s{sT1}, 98304")
    E.salu(f"s_lshl_b32 s{sT0}, s{lw}, 13")
    E.salu(f"s_add_u32 s{sT0}, s{sT0}, s{sT1}")
    E.valu("v_add_u32", vKV, f"s{sT0}", t1)
    E.salu(f"s_lshl_b32 s{sT0}, s{lw}, 11")
    E.salu(f"s_add_u32 s{sT0}, s{sT0}, s{sT1}")
    E.valu("v_add_u32", vVV, f"s{sT0}", t1)
    E.valu("v_and_b32", t1, "0x1f0", t1)
    E.valu("v_lshrrev_b32", t2, "5", L)
    E.valu("v_mul_u32_u24", aKw, "528", t2)
    E.valu("v_add_u32", aKw, aKw, t1)
    E.salu(f"s_mul_i32 s{sMO}, s{lw}, 8448")
    E.salu(f"s_add_u32 s{sT0}, s{sMO}, {KB}")
    E.valu("v_add_u32", aKw, f"s{sT0}", aKw)
    E.valu("v_mul_u32_u24", aVw, "1056", t2)
    E.valu("v_add_u32", aVw, aVw, t1)
    E.salu(f"s_mul_i32 s{sT0}, s{sT3}, 4224")
    E.salu(f"s_lshl_b32 s{sT1}, s{sT2}, 9")
    E.salu(f"s_add_u32 s{sT0}, s{sT0}, s{sT1}")
    E.valu("v_add_u32", aVw, f"s{sT0}", aVw)
    E.salu(f"s_lshl_b32 s{sT0}, s{sP}, 9")
    E.salu(f"s_lshl_b32 s{sT1}, s{sT2}, 8")
    E.salu(f"s_add_u32 s{sT0}, s{sT0}, s{sT1}")
    E.salu(f"s_lshl_b32 s{sT1}, s{sT3}, 6")
    E.salu(f"s_add_u32 s{sT0}, s{sT0}, s{sT1}")
    E.salu(f"s_mul_i32 s{sT0}, s{sT0}, 896")
    E.valu("v_lshrrev_b32", t2, "3", L)
    E.valu("v_mul_u32_u24", vO, "7168", t2)
    E.valu("v_and_b32", t2, "7", L)
    E.valu("v_lshlrev_b32", t2, "4", t2)
    E.valu("v_add_u32", vO, vO, t2)
    E.valu("v_add_u32", vO, f"s{sT0}", vO)
    E.salu(f"s_mul_i32 s{sOC}, s{sROT}, 128")

    kvn = [0]
    def ldKV(n):
        if cfg.noload or cfg.nokv: return
        for _ in range(n):
            j = kvn[0]
            if j >= 48: return
            kvn[0] += 1
            if j < 24:
                off = (j >> 3) * 32768 + (j & 7) * 1024; srd = sK; vo = vKV; tag = ("K", j >> 3)
            else:
                jj = j - 24
                off = (jj >> 1) * 8192 + (jj & 1) * 1024; srd = sV; vo = vVV; tag = ("V", jj)
            E.salu(f"s_mov_b32 s{sT1}, {off & ~4095}")
            E.ins(f"buffer_load_dwordx4 {vr(4*j,4)}, v{vo}, s[{srd}:{srd+3}], s{sT1} offen offset:{off & 4095} nt",
                  "vmem", rd=[vo], wr=R(4 * j, 4), tag=tag)
    def wrK(third):
        if cfg.noload or cfg.nokv: return
        for i in range(8):
            E.ds_write("ds_write_b128", aKw, 4 * (8 * third + i), 4, i * 1056)
        if third < 2: E.valu("v_add_u32", aKw, str(SLOT), aKw)
    def wrV(b0, b1):
        if cfg.noload or cfg.nokv: return
        for blk in range(b0, b1):
            for e in range(2):
                E.ds_write("ds_write_b128", aVw, 96 + 4 * (2 * blk + e), 4, (blk - b0) * 8448 + e * 2112)
        E.valu("v_add_u32", aVw, str((b1 - b0) * 8448), aVw)
    def ldO(j):
        kh = j & 1
        for i in range(8):
            dma(sWO, vO, f"s{sMO}, {T_O[j % 4] + i * 1056}", f"s{sOC}, {(128 * kh + i) * 896}", ("O", j))
        if kh:
            E.salu(f"s_add_u32 s{sOC}, s{sOC}, 128")
            E.salu(f"s_cmp_ge_u32 s{sOC}, 896")
            E.salu(f"s_cselect_b32 s{sOC}, 0, s{sOC}")

    kv = cfg.kv_sched or {-1: 0, 0: 8, 2: 8, 4: 8, 6: 8, 8: 8, 10: 8}
    ldW(1); ldX(1); ldW(2); ldW(3)
    ldKV(kv.get(-1, 0))
    E.wait_vm_tag({("X", 0), ("W", 0)})
    bar()
    ldKV(kv.get(0, 0))
    E.wait_vm_tag({("W", 1)})
    bar()
    for s in range(13):
        if s & 1 and (s + 1) // 2 + 1 <= 6: ldX((s + 1) // 2 + 1)
        if s + 4 <= 13: ldW(s + 4)
        ldKV(kv.get(s + 1, 0))
        if s + 1 >= 11: wrK(s + 1 - 11)
        if s + 2 <= 13: E.wait_vm_tag({("W", s + 2), ("X", (s + 2) // 2)})
        E.wait_lgkm(0)
        bar()
    ldKV(48)
    wrV(0, 7)
    bar()
    ldO(0)
    wrV(7, 12)
    E.wait_lgkm(0)
    bar()
    E.wait_vm_tag({("O", 0)})
    bar()
    ldO(1); ldO(2); ldO(3)
    E.wait_vm_tag({("O", 1)})
    bar()
    for j in range(13):
        if j + 4 <= 13: ldO(j + 4)
        if j + 2 <= 13: E.wait_vm_tag({("O", j + 2)})
        bar()
    bar()
    assert nb[0] == 33
    if cfg.prof:
        E.raw(f"    s_memrealtime s[{sTM+2}:{sTM+3}]")
        E.raw("    s_waitcnt lgkmcnt(0)")
        E.ins(f"v_writelane_b32 v{vT1}, s{sTM+2}, 63", "valu", wr=[vT1])
        E.salu(f"s_lshl_b32 s{sT0}, s2, 2")
        E.salu(f"s_add_u32 s{sT0}, s{sT0}, s{lw}")
        E.salu(f"s_lshl_b32 s{sT0}, s{sT0}, 9")
        E.salu(f"s_add_u32 s{sT0}, s{sT0}, {PROF_OFF}")
        E.valu("v_lshlrev_b32", t1, "2", L)
        E.ins(f"buffer_store_dword v{vT0}, v{t1}, s[{sWS}:{sWS+3}], s{sT0} offen", "vmem", rd=[vT0, t1])
        E.ins(f"buffer_store_dword v{vT1}, v{t1}, s[{sWS}:{sWS+3}], s{sT0} offen offset:256", "vmem", rd=[vT1, t1])
        if cfg.dbg: dbg_tail(E, cfg, vT0, vT1, t1, t2, lw)

def dbg_tail(E, cfg, vT0, vT1, t1, t2, lw):
    sel = [0, 1, 4, 8, 11, 14, 15, 17, 18, 24, 31, 32]
    E.salu(f"s_cmp_lg_u32 s{lw}, 0")
    E.raw("    s_cbranch_scc1 L_exit")
    E.raw("    s_load_dwordx2 s[88:89], s[0:1], 88")
    E.salu("s_mov_b32 s90, 64"); E.salu("s_mov_b32 s91, 0x00020000")
    E.ins(f"v_readlane_b32 s92, v{vT0}, 62", "rfl", rd=[vT0], swr=[92])
    E.ins(f"v_readlane_b32 s93, v{vT1}, 62", "rfl", rd=[vT1], swr=[93])
    E.ins(f"v_readlane_b32 s94, v{vT1}, 63", "rfl", rd=[vT1], swr=[94])
    E.valu("v_mov_b32", t2, "0")
    for i, b in enumerate(sel):
        E.ins(f"v_readlane_b32 s95, v{vT1}, {b}", "rfl", rd=[vT1], swr=[95])
        E.salu("s_sub_u32 s96, s95, s92", srd=[95, 92], swr=[96])
        E.ins(f"v_writelane_b32 v{t2}, s96, {i}", "valu", wr=[t2], rd=[t2])
    E.raw("    s_waitcnt lgkmcnt(0)")
    E.salu("s_add_u32 s88, s88, 512"); E.salu("s_addc_u32 s89, s89, 0")
    E.salu(f"s_cmp_lg_u32 s2, {cfg.dbgwg}")
    E.raw("    s_cbranch_scc1 L_dbg1")
    E.valu("v_lshlrev_b32", t1, "2", vL)
    E.ins(f"buffer_store_dword v{t2}, v{t1}, s[88:91], 0 offen offset:16", "vmem", rd=[t1, t2])
    E.label("L_dbg1")
    E.salu("s_not_b32 s93, s93", srd=[93])
    E.salu("s_mov_b64 exec, 1")
    E.valu("v_mov_b32", t1, "0")
    E.valu("v_mov_b32", vT0, "s93")
    E.valu("v_mov_b32", vT1, "s94")
    E.ins(f"buffer_atomic_umax v{vT0}, v{t1}, s[88:91], 0 offen sc1", "vmem", rd=[vT0, t1])
    E.ins(f"buffer_atomic_umax v{vT1}, v{t1}, s[88:91], 0 offen offset:4 sc1", "vmem", rd=[vT1, t1])

def reduce_kernel(E, cfg):
    E.salu("s_cmp_ge_u32 s2, 672")
    E.raw("    s_cbranch_scc1 L_exit2")
    E.raw("    s_load_dwordx2 s[4:5], s[0:1], 80")
    E.raw("    s_load_dwordx2 s[6:7], s[0:1], 96")
    if cfg.dbg:
        E.raw("    s_memrealtime s[40:41]")
        E.raw("    s_load_dwordx2 s[44:45], s[0:1], 88")
    E.salu("s_mul_i32 s16, s2, 3121")
    E.salu("s_lshr_b32 s16, s16, 16")
    E.salu("s_mul_i32 s17, s16, 21")
    E.salu("s_sub_u32 s17, s2, s17")
    E.valu("v_lshrrev_b32", 1, "6", 0)
    E.salu("s_mul_i32 s18, s16, %d" % (8 * PART))
    E.ins("v_readfirstlane_b32 s19, v1", "rfl", rd=[1], swr=[19])
    E.salu("s_lshl_b32 s20, s17, 12")
    E.salu("s_add_u32 s18, s18, s20")
    E.valu("v_lshlrev_b32", 2, "4", 0)
    E.raw("    s_waitcnt lgkmcnt(0)")
    E.salu("s_mov_b32 s8, s6"); E.salu("s_mov_b32 s9, s7"); E.salu("s_mov_b32 s10, 0x10000000"); E.salu("s_mov_b32 s11, 0x00020000")
    E.salu("s_mov_b32 s12, s4"); E.salu("s_mov_b32 s13, s5"); E.salu("s_mov_b32 s14, 2752512"); E.salu("s_mov_b32 s15, 0x00020000")
    for p in range(8):
        E.ins(f"buffer_load_dwordx4 {vr(8+4*p,4)}, v2, s[8:11], s18 offen", "vmem", rd=[2], wr=R(8+4*p, 4))
        if p < 7: E.salu(f"s_add_u32 s18, s18, {PART}")
    E.salu("s_lshl_b32 s20, s17, 2")
    E.salu("s_add_u32 s20, s20, s19", srd=[19])
    E.salu("s_mul_i32 s21, s20, 5462")
    E.salu("s_lshr_b32 s21, s21, 16")
    E.salu("s_mul_i32 s22, s21, 12")
    E.salu("s_sub_u32 s22, s20, s22")
    E.salu("s_cmp_ge_u32 s22, 6")
    E.salu("s_cselect_b32 s23, 1, 0")
    E.salu("s_mul_i32 s24, s23, 6")
    E.salu("s_sub_u32 s24, s22, s24")
    E.salu("s_and_b32 s25, s16, 15")
    E.salu("s_mul_i32 s25, s25, 96")
    E.salu("s_lshl_b32 s24, s24, 4")
    E.salu("s_add_u32 s25, s25, s24")
    E.salu("s_mul_i32 s25, s25, 1792")
    E.salu("s_lshr_b32 s26, s16, 4")
    E.salu("s_mul_i32 s26, s26, 896")
    E.salu("s_add_u32 s25, s25, s26")
    E.salu("s_lshl_b32 s21, s21, 7")
    E.salu("s_add_u32 s25, s25, s21")
    E.salu("s_lshl_b32 s23, s23, 6")
    E.salu("s_add_u32 s25, s25, s23")
    E.valu("v_and_b32", 3, "15", 0)
    E.valu("v_mul_u32_u24", 3, "1792", 3)
    E.valu("v_and_b32", 4, "48", 0)
    E.valu("v_lshrrev_b32", 4, "1", 4)
    E.valu("v_add_u32", 3, 3, 4)
    E.salu("s_mov_b32 s27, 0xffff0000")
    ACC = 40
    for p in range(8):
        for k in range(4):
            src = 8 + 4 * p + k
            if p == 0:
                E.valu("v_lshlrev_b32", ACC + 2 * k, "16", src)
                E.valu("v_and_b32", ACC + 2 * k + 1, "s27", src)
            else:
                E.valu("v_lshlrev_b32", 5, "16", src)
                E.valu("v_and_b32", 6, "s27", src)
                E.valu("v_add_f32", ACC + 2 * k, ACC + 2 * k, 5)
                E.valu("v_add_f32", ACC + 2 * k + 1, ACC + 2 * k + 1, 6)
    for k in range(4):
        E.cvt(48 + k, ACC + 2 * k, ACC + 2 * k + 1)
    E.ins("buffer_store_dwordx2 v[48:49], v3, s[12:15], s25 offen", "vmem", rd=[48, 49, 3])
    E.ins("buffer_store_dwordx2 v[50:51], v3, s[12:15], s25 offen offset:32", "vmem", rd=[50, 51, 3])
    if cfg.dbg:
        E.wait_vm(0)
        E.raw("    s_memrealtime s[42:43]")
        E.salu("s_and_b32 s48, s2, 15"); E.salu("s_add_u32 s48, s48, s19"); E.salu("s_cmp_lg_u32 s48, 0")
        E.raw("    s_cbranch_scc1 L_exit2")
        E.salu("s_mov_b32 s46, 64"); E.salu("s_mov_b32 s47, 0x00020000")
        E.raw("    s_waitcnt lgkmcnt(0)")
        E.salu("s_not_b32 s40, s40")
        E.salu("s_mov_b64 exec, 1")
        E.valu("v_mov_b32", 1, "0"); E.valu("v_mov_b32", 2, "s40"); E.valu("v_mov_b32", 3, "s42")
        E.ins("buffer_atomic_umax v2, v1, s[44:47], 0 offen offset:8 sc1", "vmem", rd=[1, 2])
        E.ins("buffer_atomic_umax v3, v1, s[44:47], 0 offen offset:12 sc1", "vmem", rd=[1, 3])

def kdesc(name, vgpr, sgpr=102):
    acc = (vgpr + 3) // 4 * 4
    return f""".p2align 6
.amdhsa_kernel {name}
  .amdhsa_next_free_vgpr {vgpr}
  .amdhsa_next_free_sgpr {sgpr}
  .amdhsa_accum_offset {acc}
  .amdhsa_group_segment_fixed_size 0
  .amdhsa_kernarg_size 104
  .amdhsa_user_sgpr_count 2
  .amdhsa_user_sgpr_kernarg_segment_ptr 1
  .amdhsa_system_sgpr_workgroup_id_x 1
.end_amdhsa_kernel
"""

def generate(cfg):
    ref = open(f"cdna_kernels/{NAME}.s.ref").read().split("\n")
    hdr = [l for l in ref if l.startswith(";") and "@launch" not in l and "Override" not in l and "grid=ceil" not in l]
    out = "\n".join(hdr) + "\n"
    if cfg.only != 2: out += f"; @launch kernel={K1} grid=(256,1,1) block=(512,1,1) lds=163840\n"
    if cfg.only != 1: out += f"; @launch kernel={K2} grid=(672,1,1) block=(256,1,1) lds=0\n"
    out += '.amdgcn_target "amdgcn-amd-amdhsa--gfx950"\n.text\n'
    out += f".globl {K1}\n.p2align 8\n.type {K1},@function\n{K1}:\n"
    E = Emit(); prologue(E)
    st = (E.pos, dict(E.lastw), dict(E.sgpr_valu))
    compute(E, cfg)
    E.raw("    s_endpgm")
    E.label("L_loader")
    E.reset(); E.pos, E.lastw, E.sgpr_valu = st[0], dict(st[1]), dict(st[2])
    loader(E, cfg)
    E.label("L_exit")
    E.raw("    s_endpgm")
    out += E.text()
    out += f".globl {K2}\n.p2align 8\n.type {K2},@function\n{K2}:\n"
    E = Emit(); reduce_kernel(E, cfg)
    E.label("L_exit2")
    E.raw("    s_endpgm")
    out += E.text()
    out += '.section .rodata,"a"\n' + kdesc(K1, 256) + kdesc(K2, 56)
    return out

if __name__ == "__main__":
    import argparse
    ap = argparse.ArgumentParser()
    ap.add_argument("-o", default=f"cdna_kernels/{NAME}.s")
    ap.add_argument("--prof", action="store_true")
    ap.add_argument("--dump", default=None)
    ap.add_argument("--set", nargs="*", default=[])
    a = ap.parse_args()
    cfg = Cfg(); cfg.prof = a.prof; cfg.dump = a.dump
    for kv in a.set:
        k, v = kv.split("="); assert hasattr(cfg, k), k; setattr(cfg, k, eval(v))
    open(a.o, "w").write(generate(cfg))
```

```python
import sys, os
from collections import deque
sys.path.insert(0, os.path.dirname(os.path.abspath(__file__)))
from asmlib import *

NAME = "concat_heads__mha_block_cached__gqa_block_cached__near_ridge"
K1 = NAME + "_kernel"
K2 = "reduce_kernel"

SLOT = 33792
S_Q = [130048, 0, 62464, 96256]
X_Q = [33792, 46080]
KB = 62464
VB = 0
T_O = [101376, 0, 33792, 67584]
EXB = 135168
PART = 86016
PROF_OFF = 64 << 20
DUMP_OFF = 32 << 20

sX, sWQ, sK, sV, sWO, sWS = 40, 44, 48, 52, 56, 60
sB, sP, sBR, sW, sROT, sHH, sRH, sLW = 64, 65, 66, 67, 68, 69, 70, 71
sT0, sT1, sT2, sT3 = 72, 73, 74, 75
sC = 76
sROTO = 88
sCH = 89
sMQ, sROW, sXK, sMX, sMO, sOC = 78, 79, 80, 81, 82, 83
sTM = 84

class Cfg:
    LA = 7
    DELAY = 2
    prof = False
    dump = None
    kv_sched = None
    noload = False
    nokv = False
    spread = True
    lprio = 0
    cprio = 0
    noexch = False
    only = 0
    LA2 = 5
    onelds = False
    xmode = "b64"
    DELAY2 = 2
    stflag = " sc1"
    kvflag = " nt"
    sched = None
    kv = [{"B0": 8, "B2": 8, "B4": 8, "B6": 8, "B8": 8, "B10": 8}]
    dbg = False
    dbgwg = 0

class Grp:
    def __init__(self, reads, mfmas, barrier=False, after=None, fill=None):
        self.reads = reads; self.mfmas = mfmas; self.barrier = barrier
        self.after = after or []; self.fill = fill or []

class F:
    def __init__(self, fn, ready=-1, cost=1, dsw=False, due=1<<30):
        self.fn = fn; self.ready = ready; self.cost = cost; self.dsw = dsw; self.due = due

RING = 216
def ring(i): return RING + 4 * (i % 8)

def stream(E, groups, cfg, nxt=0, LA=None, DELAY=None):
    LA = cfg.LA if LA is None else LA
    DELAY = cfg.DELAY if DELAY is None else DELAY
    side = deque(); fill = deque()
    last_emit = [-100]
    n = len(groups)
    def try_queue(i, force=False):
        nonlocal nxt
        while nxt < n and nxt <= i + LA:
            H = groups[nxt]
            if H.barrier:
                must = force or nxt <= i
                if must:
                    while side: side.popleft()()
                    while any(f.dsw for f in fill): fill.popleft().fn()
                elif side or any(f.dsw for f in fill) or i < last_emit[0] + DELAY:
                    break
                E.wait_lgkm(0); E.barrier(); H.barrier = False
                fill.extend(H.after)
            side.extend(H.reads); nxt += 1
    for i, G in enumerate(groups):
        if not G.mfmas: continue
        try_queue(i)
        assert nxt > i
        while any(f.due <= i for f in fill):
            f = fill.popleft(); assert f.ready < i; f.fn()
        fill.extend(G.fill)
        while any(r in side for r in G.reads): side.popleft()()
        for mf in G.mfmas:
            mf()
            budget = 2
            nrd = 1 if (cfg.spread and len(side) <= 3) else 2
            while budget > 0 and side and nrd > 0:
                side.popleft()(); budget -= 1; last_emit[0] = i; nrd -= 1
            while budget > 0 and fill and fill[0].ready < i:
                if cfg.onelds and fill[0].dsw:
                    if nrd <= 0:
                        break
                    nrd -= 1
                f = fill.popleft(); f.fn(); budget -= f.cost
                if f.dsw: last_emit[0] = i
    try_queue(n + 100, force=True)
    while side: side.popleft()()
    while fill: fill.popleft().fn()

def dump_regs(E, regs, tag):
    E.comment("dump " + tag)
    E.wait_lgkm(0)
    E.nop(16)
    E.salu(f"s_lshl_b32 s{sT0}, s2, 2", swr=[sT0])
    E.salu(f"s_add_u32 s{sT0}, s{sT0}, s{sW}", swr=[sT0])
    E.salu(f"s_mul_i32 s{sT0}, s{sT0}, {256*256}", swr=[sT0])
    E.salu(f"s_add_u32 s{sT0}, s{sT0}, {DUMP_OFF}", swr=[sT0])
    E.valu("v_lshlrev_b32", 254, "2", 255)
    for k, r in enumerate(regs):
        E.ins(f"buffer_store_dword v{r}, v254, s[{sWS}:{sWS+3}], s{sT0} offen", "vmem", rd=[r, 254])
        E.salu(f"s_add_u32 s{sT0}, s{sT0}, 256", swr=[sT0])
        if k % 32 == 31: E.wait_vm(0)
    E.wait_vm(0)

def prologue(E):
    E.salu("s_cmp_ge_u32 s2, 256")
    E.raw("    s_cbranch_scc1 L_exit")
    E.raw("    s_load_dwordx16 s[16:31], s[0:1], 0")
    E.raw("    s_load_dwordx4 s[32:35], s[0:1], 64")
    E.raw("    s_load_dwordx2 s[36:37], s[0:1], 96")
    E.valu("v_lshrrev_b32", 1, "6", 0)
    E.valu("v_and_b32", 255, "63", 0)
    E.salu(f"s_and_b32 s{sT0}, s2, 7")
    E.salu(f"s_lshr_b32 s{sBR}, s{sT0}, 2")
    E.salu(f"s_and_b32 s{sT0}, s{sT0}, 3")
    E.salu(f"s_lshr_b32 s{sT1}, s2, 3")
    E.salu(f"s_and_b32 s{sB}, s{sT1}, 15")
    E.salu(f"s_lshr_b32 s{sT1}, s{sT1}, 4")
    E.salu(f"s_lshl_b32 s{sP}, s{sT0}, 1")
    E.salu(f"s_add_u32 s{sP}, s{sP}, s{sT1}")
    E.ins(f"v_readfirstlane_b32 s{sW}, v1", "rfl", rd=[1], swr=[sW])
    E.salu(f"s_mul_i32 s{sT1}, s{sT1}, 3")
    E.salu(f"s_add_u32 s{sROT}, s{sB}, s{sT1}")
    for _ in range(2):
        E.salu(f"s_sub_u32 s{sT0}, s{sROT}, 7")
        E.salu(f"s_cmp_ge_u32 s{sROT}, 7")
        E.salu(f"s_cselect_b32 s{sROT}, s{sT0}, s{sROT}")
    E.salu(f"s_mov_b32 s{sROTO}, s{sB}")
    for _ in range(2):
        E.salu(f"s_sub_u32 s{sT0}, s{sROTO}, 7")
        E.salu(f"s_cmp_ge_u32 s{sROTO}, 7")
        E.salu(f"s_cselect_b32 s{sROTO}, s{sT0}, s{sROTO}")
    E.raw("    s_waitcnt lgkmcnt(0)")
    E.salu(f"s_cmp_eq_u32 s{sBR}, 0")
    for srd, a, b, nrec in ((sX, 16, 26, 1376256), (sK, 18, 28, 12582912), (sV, 20, 30, 12582912),
                            (sWQ, 22, 32, 3670016), (sWO, 24, 34, 3670016)):
        E.salu(f"s_cselect_b32 s{srd}, s{a}, s{b}")
        E.salu(f"s_cselect_b32 s{srd+1}, s{a+1}, s{b+1}")
        E.salu(f"s_mov_b32 s{srd+2}, {nrec}")
        E.salu(f"s_mov_b32 s{srd+3}, 0x00020000")
    E.salu(f"s_mov_b32 s{sWS}, s36")
    E.salu(f"s_mov_b32 s{sWS+1}, s37")
    E.salu(f"s_mov_b32 s{sWS+2}, 0x10000000")
    E.salu(f"s_mov_b32 s{sWS+3}, 0x00020000")
    E.salu(f"s_cmp_ge_u32 s{sW}, 4", srd=[sW])
    E.raw("    s_cbranch_scc1 L_loader")

aW = [248, 249, 250, 251]; aX = 252; aK = 253; aV = 254; vL = 255
XF = 192

def compute(E, cfg):
    L = vL
    if cfg.cprio: E.salu(f"s_setprio {cfg.cprio}")
    E.salu(f"s_lshr_b32 s{sHH}, s{sW}, 1", srd=[sW])
    E.salu(f"s_and_b32 s{sRH}, s{sW}, 1", srd=[sW])
    E.salu(f"s_mov_b32 s{sC}, 0x3db8aa3b")
    E.salu(f"s_mov_b32 s{sC+1}, 0x3db8aa3b")
    m, g, r, c4, btr, t1, t2 = 1, 2, 3, 4, 5, 6, 7
    E.valu("v_and_b32", m, "15", L)
    E.valu("v_lshrrev_b32", g, "4", L)
    E.valu("v_lshrrev_b32", r, "2", m)
    E.valu("v_and_b32", c4, "3", m)
    E.valu("v_and_b32", t1, "1", g)
    E.valu("v_lshlrev_b32", t1, "2", t1)
    E.valu("v_add_u32", t1, t1, r)
    E.valu("v_mul_u32_u24", btr, "1056", t1)
    E.valu("v_lshlrev_b32", t1, "3", c4)
    E.valu("v_add_u32", btr, btr, t1)
    E.valu("v_lshrrev_b32", t2, "1", g)
    E.valu("v_mul_u32_u24", t1, "16896", t2)
    E.valu("v_add_u32", t1, t1, btr)
    E.salu(f"s_lshl_b32 s{sT0}, s{sHH}, 9")
    for k in range(4):
        E.salu(f"s_add_u32 s{sT1}, s{sT0}, {S_Q[k]}")
        E.valu("v_add_u32", aW[k], f"s{sT1}", t1)
    E.salu(f"s_mul_i32 s{sT0}, s{sRH}, 3072")
    E.valu("v_lshlrev_b32", t1, "4", L)
    E.valu("v_add_u32", aX, f"s{sT0}", t1)
    E.salu(f"s_mul_i32 s{sT0}, s{sHH}, {96*528}")
    E.salu(f"s_add_u32 s{sT0}, s{sT0}, {KB}")
    E.valu("v_mul_u32_u24", t1, "528", m)
    E.valu("v_lshlrev_b32", aK, "3", g)
    E.valu("v_add_u32", aK, aK, t1)
    E.valu("v_add_u32", aK, f"s{sT0}", aK)
    E.salu(f"s_mul_i32 s{sT0}, s{sHH}, 25344")
    E.valu("v_lshlrev_b32", t1, "8", t2)
    E.valu("v_add_u32", t1, t1, btr)
    E.valu("v_add_u32", aV, f"s{sT0}", t1)

    def acc(t, rt): return (3 * t + rt) * 4
    def qf(s, rt): return 24 * s + 4 * rt
    def sacc(kt, rt): return 24 * kt + 12 + 4 * rt
    def tr(d, addr, off): return lambda: E.ds_read("ds_read_b64_tr_b16", d, 2, addr, off)
    def rd64(d, addr, off): return lambda: E.ds_read("ds_read_b64", d, 2, addr, off)
    def rd128(d, addr, off): return lambda: E.ds_read("ds_read_b128", d, 4, addr, off)
    def mf(d, a, b, c): return lambda: E.mfma(d, a, b, c)
    def cv(d, a, b): return lambda: E.cvt(d, a, b)

    groups = []
    for s in range(14):
        xs = XF + 12 * (s & 1)
        for t in range(16):
            gi = len(groups)
            reads = []
            if t == 0:
                reads += [rd128(xs + 4 * rt, aX, X_Q[(s >> 1) & 1] + (s & 1) * 6144 + rt * 1024) for rt in range(3)]
            reads += [tr(ring(gi) + 2 * i, aW[s % 4], i * 8448 + 32 * t) for i in range(2)]
            mfmas = [mf(acc(t, rt), ring(gi), xs + 4 * rt, None if s == 0 else acc(t, rt)) for rt in range(3)]
            fill = []
            if s == 13 and (t & 1) and cfg.dump != 'Q':
                sq = t >> 1
                for rt in range(3):
                    a0 = acc(t - 1, rt); a1 = acc(t, rt)
                    due = 224 + sq
                    fill += [F(cv(a0, a0, a0 + 1), gi, due=due), F(cv(a0 + 1, a0 + 2, a0 + 3), gi, due=due),
                             F(cv(a0 + 2, a1, a1 + 1), gi, due=due), F(cv(a0 + 3, a1 + 2, a1 + 3), gi, due=due)]
            groups.append(Grp(reads, mfmas, barrier=(t == 0), fill=fill))
    MX = [192, 194, 196]; TM = [193, 195, 197]
    if cfg.dump == 'Q':
        groups.append(Grp([], [], barrier=True))
        stream(E, groups, cfg)
        dump_regs(E, list(range(192)), 'Q')
        for _ in range(15, 39): E.barrier()
        return
    for kt in range(6):
        for s in range(8):
            gi = len(groups)
            reads = [rd64(ring(gi) + 2 * i, aK, kt * 8448 + 64 * s + 32 * i) for i in range(2)]
            mfmas = [mf(sacc(kt, rt), ring(gi), qf(s, rt), None if s == 0 else sacc(kt, rt)) for rt in range(3)]
            fill = []
            if s == 7:
                for rt in range(3):
                    a = sacc(kt, rt)
                    if kt == 0:
                        fill.append(F((lambda a=a, rt=rt: E.valu("v_max3_f32", MX[rt], a, a + 1, a + 2)), gi))
                        fill.append(F((lambda a=a, rt=rt: E.valu("v_max_f32", MX[rt], MX[rt], a + 3)), gi))
                    else:
                        fill.append(F((lambda a=a, rt=rt: E.valu("v_max3_f32", MX[rt], MX[rt], a, a + 1)), gi))
                        fill.append(F((lambda a=a, rt=rt: E.valu("v_max3_f32", MX[rt], MX[rt], a + 2, a + 3)), gi))
            groups.append(Grp(reads, mfmas, barrier=(kt == 0 and s == 0), fill=fill))
    groups.append(Grp([], [], barrier=True))
    stream(E, groups, cfg)
    if cfg.dump == 'S':
        dump_regs(E, list(range(200)), 'S')
        for _ in range(16, 39): E.barrier()
        return
    def xlane(regs, tmps, op):
        for pm in ("v_permlane32_swap_b32", "v_permlane16_swap_b32"):
            for rt in range(3): E.valu("v_mov_b32", tmps[rt], regs[rt])
            for rt in range(3):
                E.ins(f"{pm} v{regs[rt]}, v{tmps[rt]}", "perm", rd=[regs[rt], tmps[rt]], wr=[regs[rt], tmps[rt]])
            for rt in range(3): E.valu(op, regs[rt], regs[rt], tmps[rt])
    xlane(MX, TM, "v_max_f32")
    for rt in range(3): E.valu("v_mul_f32", MX[rt], f"s{sC}", MX[rt])
    aEw, aEr, aOo, aOp = 252, 253, 254, 255
    vSt = aEw
    E.valu("v_lshlrev_b32", TM[1], "4" if cfg.xmode == "b128" else "3", L)
    E.salu(f"s_mul_i32 s{sT1}, s{sW}, 3072")
    E.salu(f"s_add_u32 s{sT0}, s{sT1}, {EXB}")
    E.valu("v_add_u32", aEw, f"s{sT0}", TM[1])
    E.salu(f"s_xor_b32 s{sT2}, s{sW}, 2")
    E.salu(f"s_mul_i32 s{sT2}, s{sT2}, 3072")
    E.salu(f"s_add_u32 s{sT2}, s{sT2}, {EXB}")
    E.valu("v_add_u32", aEr, f"s{sT2}", TM[1])
    sST, sOo, sOp = sMQ, sROW, sXK
    E.salu(f"s_lshl_b32 s{sST}, s{sBR}, 4")
    E.salu(f"s_add_u32 s{sST}, s{sST}, s{sB}")
    E.salu(f"s_lshl_b32 s{sST}, s{sST}, 3")
    E.salu(f"s_add_u32 s{sST}, s{sST}, s{sP}")
    E.salu(f"s_mul_i32 s{sST}, s{sST}, {PART}")
    E.salu(f"s_add_u32 s{sST}, s{sST}, s{sT1}")
    if cfg.xmode != "b128": E.salu(f"s_lshl_b32 s{sT0}, s{sT0}, 1")
    E.salu(f"s_sub_u32 s{sST}, s{sST}, s{sT0}")
    E.salu(f"s_mul_i32 s{sOo}, s{sHH}, {25344 - 16896 - 64}")
    E.salu(f"s_sub_u32 s{sOo}, {67584 - 50688}, s{sOo}")
    E.salu(f"s_mul_i32 s{sOp}, s{sHH}, {25344 + 16896 - 64}")
    E.salu(f"s_sub_u32 s{sOp}, {67584 - 50688 + 16896}, s{sOp}")
    E.salu(f"s_mul_i32 s{sCH}, s{sROTO}, 12288")
    def pf(s, rt): return sacc(2 * s, rt)
    SM = [198, 200, 202]
    def pk(op, d, *srcs, extra=""):
        rd = []; ops = []
        for x in srcs:
            if isinstance(x, int): rd += [x, x + 1]; ops.append(vr(x, 2))
            else: ops.append(x)
        E.ins(f"{op} {vr(d,2)}, " + ", ".join(ops) + (" " + extra if extra else ""), "valu", rd=rd, wr=[d, d + 1])
    def exp_tile(kt, rt):
        a = sacc(kt, rt)
        for k in (0, 2):
            pk("v_pk_fma_f32", a + k, a + k, f"s[{sC}:{sC+1}]", MX[rt], extra="op_sel_hi:[1,1,0] neg_lo:[0,0,1] neg_hi:[0,0,1]")
        for k in range(4): E.valu("v_exp_f32", a + k, a + k, kind="trans")
    def sum_tile(kt, rt):
        a = sacc(kt, rt)
        if kt == 0: pk("v_pk_add_f32", SM[rt], a, a + 2)
        else:
            pk("v_pk_add_f32", SM[rt], SM[rt], a); pk("v_pk_add_f32", SM[rt], SM[rt], a + 2)

    R6 = 216
    def ring6(i): return R6 + 4 * (i % 6)
    groups2 = []
    OT = [156, 180]
    OPAR = [36, 84, 132, 192, 204, 240, 108, 156]
    ACC = [12, 60]; TMP = 180
    def oacc(t, rt): return qf(t >> 1, rt) if (t & 1) == 0 else OT[(t >> 1) & 1] + 4 * rt
    def xw(q):
        fl = []
        if cfg.xmode == "none": return fl
        if cfg.xmode == "b128":
            for rt in range(3):
                fl.append(F((lambda a=qf(q, rt), o=(q & 1) * 12288 + rt * 1024:
                             E.ds_write("ds_write_b128", aEw, a, 4, o)), 6 * q + 5, dsw=True))
            return fl
        for rt in range(3):
            for h in range(2):
                fl.append(F((lambda a=qf(q, rt) + 2 * h, o=(q & 1) * 12288 + rt * 1024 + h * 512:
                             E.ds_write("ds_write_b64", aEw, a, 2, o)), 6 * q + 5, dsw=True))
        return fl
    def xr(q):
        fl = []
        if cfg.xmode in ("none", "wonly"): return fl
        if cfg.xmode == "b128":
            for rt in range(3):
                fl.append(F(rd128(OPAR[q] + 4 * rt, aEr, (q & 1) * 12288 + rt * 1024), -1, dsw=True))
            return fl
        for rt in range(3):
            d = OPAR[q] + 4 * rt; o = (q & 1) * 24 + 2 * rt
            fl.append(F((lambda d=d, o=o: E.ins(f"ds_read2st64_b64 {vr(d,4)}, v{aEr} offset0:{o} offset1:{o+1}", "ds",
                                               rd=[aEr], wr=R(d, 4))), -1, dsw=True))
        return fl
    def after_p(k):
        return (xr(k - 3) if 3 <= k <= 10 else []) + (xw(k - 2) if 2 <= k <= 9 else [])
    for t in range(16):
        for s in range(3):
            gi = len(groups2)
            reads = []
            if t == 8 and s == 0: reads.append(lambda: E.valu("v_add_u32", aV, "50688", aV))
            reads += [tr(ring6(gi) + 2 * i, aV, s * 8448 + i * 512 + 32 * (t & 7)) for i in range(2)]
            mfmas = [mf(oacc(t, rt), ring6(gi), pf(s, rt), None if s == 0 else oacc(t, rt)) for rt in range(3)]
            fill = []
            if s == 2 and (t & 1):
                for rt in range(3):
                    a0 = oacc(t - 1, rt); a1 = oacc(t, rt)
                    due = min(3 * (t + 4), 48 + 16)
                    fill += [F(cv(a0, a0, a0 + 1), gi, due=due), F(cv(a0 + 1, a0 + 2, a0 + 3), gi, due=due),
                             F(cv(a0 + 2, a1, a1 + 1), gi, due=due), F(cv(a0 + 3, a1 + 2, a1 + 3), gi, due=due)]
            k = t >> 1
            bar = (s == 0 and (t & 1) == 0 and k >= 2)
            groups2.append(Grp(reads, mfmas, barrier=bar, after=after_p(k) if bar else None, fill=fill))
    for kt in range(6):
        for rt in range(3): exp_tile(kt, rt)
        if kt >= 1:
            for rt in range(3): sum_tile(kt - 1, rt)
    for rt in range(3): sum_tile(5, rt)
    for rt in range(3): E.valu("v_add_f32", SM[rt], SM[rt], SM[rt] + 1)
    xlane(SM, TM, "v_add_f32")
    E.barrier()
    for gi in range(cfg.LA2):
        for rdf in groups2[gi].reads: rdf()
    for rt in range(3): E.valu("v_rcp_f32", SM[rt], SM[rt], kind="trans")
    for s in range(3):
        for rt in range(3):
            a0 = sacc(2 * s, rt); a1 = sacc(2 * s + 1, rt)
            for a in (a0, a0 + 2, a1, a1 + 2): pk("v_pk_mul_f32", a, a, SM[rt], extra="op_sel_hi:[1,0]")
            E.cvt(a0, a0, a0 + 1); E.cvt(a0 + 1, a0 + 2, a0 + 3)
            E.cvt(a0 + 2, a1, a1 + 1); E.cvt(a0 + 3, a1 + 2, a1 + 3)
    for j in range(14):
        c, kh = j >> 1, j & 1
        toff = T_O[j % 4] - (67584 if T_O[j % 4] >= 67584 else 0)
        order = [(par, 2 * kp + e, u) for par in range(2) for kp in range(2) for u in range(2) for e in range(2)]
        for n_, (par, ks, u) in enumerate(order):
            gi = len(groups2)
            blk, sp = ks >> 1, ks & 1
            reads = []
            if n_ == 0:
                if j == 0:
                    reads += [lambda: E.valu("v_add_u32", aOp, f"s{sOp}", aV), lambda: E.valu("v_add_u32", aOo, f"s{sOo}", aV)]
                elif j % 4 == 1:
                    reads += [lambda: E.valu("v_subrev_u32", aOo, "67584", aOo), lambda: E.valu("v_subrev_u32", aOp, "67584", aOp)]
                elif j % 4 == 3:
                    reads += [lambda: E.valu("v_add_u32", aOo, "67584", aOo), lambda: E.valu("v_add_u32", aOp, "67584", aOp)]
            reads += [tr(ring6(gi) + 2 * i, aOp if par else aOo, toff + blk * 8448 + sp * 512 + i * 128 + 32 * u) for i in range(2)]
            s = 4 * kh + ks
            first = (kh == 0 and par == 0 and ks == 0)
            mfmas = [mf(ACC[u] + 4 * rt, ring6(gi), (OPAR[s] + 4 * rt) if par else qf(s, rt),
                        None if first else ACC[u] + 4 * rt) for rt in range(3)]
            fill = []
            if kh == 1 and par == 1 and ks == 3:
                due = gi + 3
                for rt in range(3):
                    a = ACC[u] + 4 * rt; d = TMP + 4 * rt + 2 * u
                    fill += [F(cv(d, a, a + 1), gi, due=due), F(cv(d + 1, a + 2, a + 3), gi, due=due)]
                if u == 1:
                    for rt in range(3):
                        def st(rt=rt):
                            E.ins(f"buffer_store_dwordx4 {vr(TMP+4*rt,4)}, v{vSt}, s[{sWS}:{sWS+3}], s{sCH} offen offset:{rt*1024}{cfg.stflag}",
                                  "vmem", rd=R(TMP + 4 * rt, 4) + [vSt], wide=True)
                        fill.append(F(st, gi + 2 + 2 * rt))
                    def adv():
                        E.salu(f"s_add_u32 s{sCH}, s{sCH}, 12288")
                        E.salu(f"s_cmp_ge_u32 s{sCH}, {PART}")
                        E.salu(f"s_cselect_b32 s{sCH}, 0, s{sCH}")
                    fill.append(F(adv, gi))
            bar = (n_ == 0); after = None
            if j == 0 and n_ == 0: after = after_p(8)
            if j == 0 and n_ == 6: bar = True; after = after_p(9)
            if j == 0 and n_ == 10:
                bar = True
                after = after_p(10) + [F(lambda: E.valu("v_lshl_add_u32", vSt, aEw, "0" if cfg.xmode == "b128" else "1", f"s{sST}"))]
            groups2.append(Grp(reads, mfmas, barrier=bar, after=after, fill=fill))
    stream(E, groups2, cfg, nxt=cfg.LA2, LA=cfg.LA2, DELAY=cfg.DELAY2)

BARS = [f"B{i}" for i in range(17)] + [f"P{k}" for k in range(2, 11)] + [f"O{j}" for j in range(1, 14)]

def default_sched(cfg, var):
    S = {"pre": ["X0", "W0"], "B0": ["W1", "X1", "W2"], "B1": ["W3", "W4"]}
    for s in range(1, 10):
        a = []
        if s & 1: a.append(f"X{(s + 1) // 2 + 1}")
        a.append(f"W{s + 4}")
        S[f"B{s+1}"] = S.get(f"B{s+1}", []) + a
    for b, n in cfg.kv[var].items():
        S[b] = S.get(b, []) + [f"KV{n}"]
    S["B11"] = ["wK0"] + S.get("B11", []); S["B12"] = ["wK1", "T0"] + S.get("B12", []); S["B13"] = ["wK2", "T1"] + S.get("B13", [])
    S["B14"] = S.get("B14", []) + ["KV48", "wV0"]
    S["B15"] = ["wT0", "wV1"]
    for k in range(4): S[f"P{4+k}"] = [f"wT1:{2*k}:{2*k+2}"]
    S["P10"] = ["O2", "O3"]
    for j in range(1, 11): S[f"O{j}"] = [f"O{j+3}"]
    return S

def needs(b):
    if b[0] == "B":
        s = int(b[1:])
        if s <= 13:
            t = {("W", s), ("X", s // 2)}
            if s == 11: t |= {("W", 12), ("W", 13), ("X", 6)}
            return t
    if b[0] == "O": return {("O", int(b[1:]))}
    return set()

def loader(E, cfg):
    L = vL
    vW, vX, vKV, vVV, vO, aKw, aVw, vT0, vT1, t1, t2, aTw = 200, 201, 202, 203, 204, 205, 206, 207, 208, 209, 210, 211
    if cfg.lprio: E.salu(f"s_setprio {cfg.lprio}")
    E.salu(f"s_sub_u32 s{sLW}, s{sW}, 4", srd=[sW])
    lw = sLW
    if cfg.prof:
        E.valu("v_mov_b32", vT0, "0"); E.valu("v_mov_b32", vT1, "0")
        E.raw(f"    s_memtime s[{sTM}:{sTM+1}]")
        E.raw(f"    s_memrealtime s[{sTM+2}:{sTM+3}]")
        E.raw("    s_waitcnt lgkmcnt(0)")
        E.ins(f"v_writelane_b32 v{vT0}, s{sTM}, 62", "valu", wr=[vT0])
        E.ins(f"v_writelane_b32 v{vT1}, s{sTM+2}, 62", "valu", wr=[vT1])
    E.valu("v_lshlrev_b32", t1, "4", L)
    E.salu(f"s_lshl_b32 s{sT0}, s{sP}, 10")
    E.salu(f"s_lshl_b32 s{sT1}, s{lw}, 16")
    E.salu(f"s_add_u32 s{sT0}, s{sT0}, s{sT1}")
    E.valu("v_add_u32", vW, f"s{sT0}", t1)
    E.salu(f"s_lshr_b32 s{sT2}, s{lw}, 1")
    E.salu(f"s_and_b32 s{sT3}, s{lw}, 1")
    E.salu(f"s_mul_i32 s{sMQ}, s{sT2}, 16896")
    E.salu(f"s_mul_i32 s{sT0}, s{sT3}, 4224")
    E.salu(f"s_add_u32 s{sMQ}, s{sMQ}, s{sT0}")
    E.salu(f"s_mul_i32 s{sROW}, s{sROT}, {2*262144}")
    E.salu(f"s_mul_i32 s{sXK}, s{sROT}, 128")
    E.salu(f"s_mul_i32 s{sMX}, s{lw}, 3072")
    E.salu(f"s_mul_i32 s{sT0}, s{sB}, 86016")
    E.salu(f"s_mul_i32 s{sT1}, s{sT3}, {48*896}")
    E.salu(f"s_add_u32 s{sT0}, s{sT0}, s{sT1}")
    E.salu(f"s_lshl_b32 s{sT1}, s{sT2}, 6")
    E.salu(f"s_add_u32 s{sT0}, s{sT0}, s{sT1}")
    E.valu("v_and_b32", t2, "15", L)
    E.valu("v_mul_u32_u24", vX, "896", t2)
    E.valu("v_and_b32", t2, "48", L)
    E.valu("v_add_u32", vX, vX, t2)
    E.valu("v_add_u32", vX, f"s{sT0}", vX)

    def dma(srd, voff, m0expr, soffexpr, tag):
        if cfg.noload: return
        E.salu(f"s_add_u32 m0, {m0expr}", swr=["m0"])
        E.salu(f"s_add_u32 s{sT0}, {soffexpr}")
        E.ins(f"buffer_load_dwordx4 v{voff}, s[{srd}:{srd+3}], s{sT0} offen lds", "dma", rd=[voff], tag=tag)
    def ldW(s):
        for i in range(8):
            dma(sWQ, vW, f"s{sMQ}, {S_Q[s % 4] + (8 * (i >> 2) + (i & 3)) * 1056}", f"s{sROW}, {i * 8192}", ("W", s))
        E.salu(f"s_add_u32 s{sROW}, s{sROW}, 262144")
        E.salu(f"s_cmp_ge_u32 s{sROW}, {14*262144}")
        E.salu(f"s_cselect_b32 s{sROW}, 0, s{sROW}")
    def ldX(u):
        for i in range(3):
            dma(sX, vX, f"s{sMX}, {X_Q[u & 1] + i * 1024}", f"s{sXK}, {i * 14336}", ("X", u))
        E.salu(f"s_add_u32 s{sXK}, s{sXK}, 128")
        E.salu(f"s_cmp_ge_u32 s{sXK}, 896")
        E.salu(f"s_cselect_b32 s{sXK}, 0, s{sXK}")
    ldX(0); ldW(0)
    E.salu(f"s_lshl_b32 s{sT1}, s{sB}, 3")
    E.salu(f"s_add_u32 s{sT1}, s{sT1}, s{sP}")
    E.salu(f"s_mul_i32 s{sT1}, s{sT1}, 98304")
    E.salu(f"s_lshl_b32 s{sT0}, s{lw}, 13")
    E.salu(f"s_add_u32 s{sT0}, s{sT0}, s{sT1}")
    E.valu("v_add_u32", vKV, f"s{sT0}", t1)
    E.salu(f"s_mul_i32 s{sMO}, s{lw}, 8448")
    E.salu(f"s_add_u32 s{sT0}, s{sMO}, {T_O[0]}")
    E.valu("v_add_u32", aTw, f"s{sT0}", t1)
    E.valu("v_and_b32", aKw, "0x1f0", t1)
    E.valu("v_lshrrev_b32", t2, "5", L)
    E.valu("v_mul_u32_u24", t2, "528", t2)
    E.valu("v_add_u32", aKw, aKw, t2)
    E.salu(f"s_add_u32 s{sT0}, s{sMO}, {KB}")
    E.valu("v_add_u32", aKw, f"s{sT0}", aKw)
    E.valu("v_and_b32", t1, "0xf0", t1)
    E.valu("v_lshrrev_b32", t2, "4", L)
    E.valu("v_lshl_add_u32", vVV, t2, "9", t1)
    E.salu(f"s_lshl_b32 s{sT0}, s{lw}, 11")
    E.salu(f"s_add_u32 s{sT0}, s{sT0}, s{sT1}")
    E.valu("v_add_u32", vVV, f"s{sT0}", vVV)
    E.valu("v_mul_u32_u24", aVw, "1056", t2)
    E.valu("v_add_u32", aVw, aVw, t1)
    E.salu(f"s_mul_i32 s{sT0}, s{sT3}, 4224")
    E.salu(f"s_lshl_b32 s{sT1}, s{sT2}, 8")
    E.salu(f"s_add_u32 s{sT0}, s{sT0}, s{sT1}")
    E.valu("v_add_u32", aVw, f"s{sT0}", aVw)
    E.salu(f"s_lshl_b32 s{sT0}, s{sP}, 9")
    E.salu(f"s_lshl_b32 s{sT1}, s{sT2}, 8")
    E.salu(f"s_add_u32 s{sT0}, s{sT0}, s{sT1}")
    E.salu(f"s_lshl_b32 s{sT1}, s{sT3}, 6")
    E.salu(f"s_add_u32 s{sT0}, s{sT0}, s{sT1}")
    E.salu(f"s_mul_i32 s{sT0}, s{sT0}, 896")
    E.valu("v_and_b32", t1, "32", L)
    E.valu("v_and_b32", t2, "8", L)
    E.valu("v_lshl_add_u32", t1, t2, "1", t1)
    E.valu("v_and_b32", t2, "16", L)
    E.valu("v_lshrrev_b32", t2, "1", t2)
    E.valu("v_add_u32", t1, t1, t2)
    E.valu("v_mul_u32_u24", vO, "896", t1)
    E.valu("v_and_b32", t2, "7", L)
    E.valu("v_lshl_add_u32", vO, t2, "4", vO)
    E.valu("v_add_u32", vO, f"s{sT0}", vO)
    E.salu(f"s_mul_i32 s{sOC}, s{sROTO}, 128")

    nvar = len(cfg.kv)
    if nvar > 1:
        E.salu(f"s_lshr_b32 s{sT0}, s2, 3")
        E.salu(f"s_and_b32 s{sT0}, s{sT0}, {nvar-1}")
        for v in range(1, nvar):
            E.salu(f"s_cmp_eq_u32 s{sT0}, {v}")
            E.raw(f"    s_cbranch_scc1 L_lv{v}")
    import copy
    st0 = copy.deepcopy((E.pos, E.lastw, E.sgpr_valu, E.vm, E.lgkm, E.store_data, E.m0_pos))
    for var in range(nvar):
        if var:
            E.label(f"L_lv{var}")
            E.pos, E.lastw, E.sgpr_valu, E.vm, E.lgkm, E.store_data, E.m0_pos = copy.deepcopy(st0)
        kvn = [0]
        def ldKV(n):
            if cfg.noload or cfg.nokv: return
            for _ in range(n):
                j = kvn[0]
                if j >= 48: return
                kvn[0] += 1
                if j < 24:
                    off = (j >> 3) * 32768 + (j & 7) * 1024; srd = sK; vo = vKV
                else:
                    jj = j - 24
                    off = (jj % 12) * 8192 + (jj // 12) * 256; srd = sV; vo = vVV
                E.salu(f"s_mov_b32 s{sT1}, {off & ~4095}")
                E.ins(f"buffer_load_dwordx4 {vr(4*j,4)}, v{vo}, s[{srd}:{srd+3}], s{sT1} offen offset:{off & 4095}{cfg.kvflag}",
                      "vmem", rd=[vo], wr=R(4 * j, 4), tag=("KV", j))
        def wrK(third, a=0, b=8):
            if cfg.noload or cfg.nokv: return
            for i in range(a, b):
                E.ds_write("ds_write_b128", aKw, 4 * (8 * third + i), 4, i * 1056)
            if third < 2 and b == 8: E.valu("v_add_u32", aKw, str(SLOT), aKw)
        def wrV(dh, a=0, b=12):
            if cfg.noload or cfg.nokv: return
            for j in range(a, b):
                E.ds_write("ds_write_b128", aVw, 96 + 4 * (12 * dh + j), 4, (j >> 1) * 8448 + (j & 1) * 512)
            if dh == 0 and b == 12: E.valu("v_add_u32", aVw, "50688", aVw)
        def ldO(j, regs=False):
            kh = j & 1
            for i in range(8):
                if regs:
                    if cfg.noload: continue
                    d = 32 * j + 4 * i
                    E.salu(f"s_add_u32 s{sT0}, s{sOC}, {(128 * kh + i) * 896}")
                    E.ins(f"buffer_load_dwordx4 {vr(d,4)}, v{vO}, s[{sWO}:{sWO+3}], s{sT0} offen", "vmem", rd=[vO], wr=R(d, 4), tag=("T", j))
                else:
                    dma(sWO, vO, f"s{sMO}, {T_O[j % 4] + i * 1056}", f"s{sOC}, {(128 * kh + i) * 896}", ("O", j))
            if kh:
                E.salu(f"s_add_u32 s{sOC}, s{sOC}, 128")
                E.salu(f"s_cmp_ge_u32 s{sOC}, 896")
                E.salu(f"s_cselect_b32 s{sOC}, 0, s{sOC}")
        def wrT(j, a=0, b=8):
            if cfg.noload: return
            for i in range(a, b):
                E.ds_write("ds_write_b128", aTw, 32 * j + 4 * i, 4, i * 1056)
            if j == 0 and b == 8: E.valu("v_subrev_u32", aTw, str(T_O[0] - T_O[1]), aTw)
        def prio(n): E.salu(f"s_setprio {n}")
        def act(a):
            if a in ("X0", "W0"): return
            a, *rng = a.split(":")
            n = int(re.search(r"\d+", a).group(0)); k = a.rstrip("0123456789")
            {"X": ldX, "W": ldW, "KV": ldKV, "wK": wrK, "wV": wrV, "O": ldO, "T": lambda j: ldO(j, True), "wT": wrT,
             "prio": prio}[k](n, *map(int, rng))
        S = (cfg.sched or default_sched)(cfg, var)
        for a in S.get("pre", []): act(a)
        lazy = {"B15", "P2", "P3", "P5", "P6", "P7", "P9"}
        for nb, b in enumerate(BARS):
            E.wait_vm_tag(needs(b))
            if b not in lazy: E.wait_lgkm(0)
            if cfg.prof:
                E.raw(f"    s_memtime s[{sTM}:{sTM+1}]")
                E.raw("    s_waitcnt lgkmcnt(0)"); E.lgkm = []
                E.ins(f"v_writelane_b32 v{vT0}, s{sTM}, {nb}", "valu", wr=[vT0])
            E.barrier()
            if cfg.prof:
                E.raw(f"    s_memtime s[{sTM+2}:{sTM+3}]")
                E.raw("    s_waitcnt lgkmcnt(0)"); E.lgkm = []
                E.ins(f"v_writelane_b32 v{vT1}, s{sTM+2}, {nb}", "valu", wr=[vT1])
            for a in S.get(b, []): act(a)
        if var < nvar - 1: E.raw("    s_branch L_lend")
    E.label("L_lend")
    if cfg.prof:
        E.raw("    s_barrier")
        E.raw(f"    s_memtime s[{sTM}:{sTM+1}]")
        E.raw(f"    s_memrealtime s[{sTM+2}:{sTM+3}]")
        E.raw("    s_waitcnt lgkmcnt(0)")
        E.ins(f"v_writelane_b32 v{vT1}, s{sTM}, {len(BARS)}", "valu", wr=[vT1])
        E.ins(f"v_writelane_b32 v{vT0}, s{sTM}, {len(BARS)}", "valu", wr=[vT0])
        E.ins(f"v_writelane_b32 v{vT1}, s{sTM+2}, 63", "valu", wr=[vT1])
        E.salu(f"s_lshl_b32 s{sT0}, s2, 2")
        E.salu(f"s_add_u32 s{sT0}, s{sT0}, s{lw}")
        E.salu(f"s_lshl_b32 s{sT0}, s{sT0}, 9")
        E.salu(f"s_add_u32 s{sT0}, s{sT0}, {PROF_OFF}")
        E.valu("v_lshlrev_b32", t1, "2", L)
        E.ins(f"buffer_store_dword v{vT0}, v{t1}, s[{sWS}:{sWS+3}], s{sT0} offen", "vmem", rd=[vT0, t1])
        E.ins(f"buffer_store_dword v{vT1}, v{t1}, s[{sWS}:{sWS+3}], s{sT0} offen offset:256", "vmem", rd=[vT1, t1])
        if cfg.dbg: dbg_tail(E, cfg, vT0, vT1, t1, t2, lw)

def dbg_tail(E, cfg, vT0, vT1, t1, t2, lw):
    sel = [0, 1, 4, 8, 11, 14, 15, 16, 23, 26, 32, 39]
    E.salu(f"s_cmp_lg_u32 s{lw}, 0")
    E.raw("    s_cbranch_scc1 L_exit")
    E.raw("    s_load_dwordx2 s[88:89], s[0:1], 88")
    E.salu("s_mov_b32 s90, 64"); E.salu("s_mov_b32 s91, 0x00020000")
    E.ins(f"v_readlane_b32 s92, v{vT0}, 62", "rfl", rd=[vT0], swr=[92])
    E.ins(f"v_readlane_b32 s93, v{vT1}, 62", "rfl", rd=[vT1], swr=[93])
    E.ins(f"v_readlane_b32 s94, v{vT1}, 63", "rfl", rd=[vT1], swr=[94])
    E.valu("v_mov_b32", t2, "0")
    for i, b in enumerate(sel):
        E.ins(f"v_readlane_b32 s95, v{vT1}, {b}", "rfl", rd=[vT1], swr=[95])
        E.salu("s_sub_u32 s96, s95, s92", srd=[95, 92], swr=[96])
        E.ins(f"v_writelane_b32 v{t2}, s96, {i}", "valu", wr=[t2], rd=[t2])
    E.raw("    s_waitcnt lgkmcnt(0)")
    E.salu("s_add_u32 s88, s88, 512"); E.salu("s_addc_u32 s89, s89, 0")
    E.salu(f"s_cmp_lg_u32 s2, {cfg.dbgwg}")
    E.raw("    s_cbranch_scc1 L_dbg1")
    E.valu("v_lshlrev_b32", t1, "2", vL)
    E.ins(f"buffer_store_dword v{t2}, v{t1}, s[88:91], 0 offen offset:16", "vmem", rd=[t1, t2])
    E.label("L_dbg1")
    E.salu("s_not_b32 s93, s93", srd=[93])
    E.salu("s_mov_b64 exec, 1")
    E.valu("v_mov_b32", t1, "0")
    E.valu("v_mov_b32", vT0, "s93")
    E.valu("v_mov_b32", vT1, "s94")
    E.ins(f"buffer_atomic_umax v{vT0}, v{t1}, s[88:91], 0 offen sc1", "vmem", rd=[vT0, t1])
    E.ins(f"buffer_atomic_umax v{vT1}, v{t1}, s[88:91], 0 offen offset:4 sc1", "vmem", rd=[vT1, t1])

def reduce_kernel(E, cfg):
    E.salu("s_cmp_ge_u32 s2, 672")
    E.raw("    s_cbranch_scc1 L_exit2")
    E.raw("    s_load_dwordx2 s[4:5], s[0:1], 80")
    E.raw("    s_load_dwordx2 s[6:7], s[0:1], 96")
    if cfg.dbg:
        E.raw("    s_memrealtime s[40:41]")
        E.raw("    s_load_dwordx2 s[44:45], s[0:1], 88")
    E.salu("s_mul_i32 s16, s2, 3121")
    E.salu("s_lshr_b32 s16, s16, 16")
    E.salu("s_mul_i32 s17, s16, 21")
    E.salu("s_sub_u32 s17, s2, s17")
    E.valu("v_lshrrev_b32", 1, "6", 0)
    E.salu("s_mul_i32 s18, s16, %d" % (8 * PART))
    E.ins("v_readfirstlane_b32 s19, v1", "rfl", rd=[1], swr=[19])
    E.salu("s_lshl_b32 s20, s17, 12")
    E.salu("s_add_u32 s18, s18, s20")
    E.valu("v_lshlrev_b32", 2, "4", 0)
    E.raw("    s_waitcnt lgkmcnt(0)")
    E.salu("s_mov_b32 s8, s6"); E.salu("s_mov_b32 s9, s7"); E.salu("s_mov_b32 s10, 0x10000000"); E.salu("s_mov_b32 s11, 0x00020000")
    E.salu("s_mov_b32 s12, s4"); E.salu("s_mov_b32 s13, s5"); E.salu("s_mov_b32 s14, 2752512"); E.salu("s_mov_b32 s15, 0x00020000")
    for p in range(8):
        E.ins(f"buffer_load_dwordx4 {vr(8+4*p,4)}, v2, s[8:11], s18 offen", "vmem", rd=[2], wr=R(8+4*p, 4))
        if p < 7: E.salu(f"s_add_u32 s18, s18, {PART}")
    E.salu("s_lshl_b32 s20, s17, 2")
    E.salu("s_add_u32 s20, s20, s19", srd=[19])
    E.salu("s_mul_i32 s21, s20, 5462")
    E.salu("s_lshr_b32 s21, s21, 16")
    E.salu("s_mul_i32 s22, s21, 12")
    E.salu("s_sub_u32 s22, s20, s22")
    E.salu("s_cmp_ge_u32 s22, 6")
    E.salu("s_cselect_b32 s23, 1, 0")
    E.salu("s_mul_i32 s24, s23, 6")
    E.salu("s_sub_u32 s24, s22, s24")
    E.salu("s_and_b32 s25, s16, 15")
    E.salu("s_mul_i32 s25, s25, 96")
    E.salu("s_lshl_b32 s24, s24, 4")
    E.salu("s_add_u32 s25, s25, s24")
    E.salu("s_mul_i32 s25, s25, 1792")
    E.salu("s_lshr_b32 s26, s16, 4")
    E.salu("s_mul_i32 s26, s26, 896")
    E.salu("s_add_u32 s25, s25, s26")
    E.salu("s_lshl_b32 s21, s21, 7")
    E.salu("s_add_u32 s25, s25, s21")
    E.salu("s_lshl_b32 s23, s23, 6")
    E.salu("s_add_u32 s25, s25, s23")
    E.valu("v_and_b32", 3, "15", 0)
    E.valu("v_mul_u32_u24", 3, "1792", 3)
    E.valu("v_and_b32", 4, "48", 0)
    E.valu("v_lshrrev_b32", 4, "1", 4)
    E.valu("v_add_u32", 3, 3, 4)
    E.salu("s_mov_b32 s27, 0xffff0000")
    ACC = 40
    for p in range(8):
        for k in range(4):
            src = 8 + 4 * p + k
            if p == 0:
                E.valu("v_lshlrev_b32", ACC + 2 * k, "16", src)
                E.valu("v_and_b32", ACC + 2 * k + 1, "s27", src)
            else:
                E.valu("v_lshlrev_b32", 5, "16", src)
                E.valu("v_and_b32", 6, "s27", src)
                E.valu("v_add_f32", ACC + 2 * k, ACC + 2 * k, 5)
                E.valu("v_add_f32", ACC + 2 * k + 1, ACC + 2 * k + 1, 6)
    for k in range(4):
        E.cvt(48 + k, ACC + 2 * k, ACC + 2 * k + 1)
    E.ins("buffer_store_dwordx2 v[48:49], v3, s[12:15], s25 offen", "vmem", rd=[48, 49, 3])
    E.ins("buffer_store_dwordx2 v[50:51], v3, s[12:15], s25 offen offset:32", "vmem", rd=[50, 51, 3])
    if cfg.dbg:
        E.wait_vm(0)
        E.raw("    s_memrealtime s[42:43]")
        E.salu("s_and_b32 s48, s2, 15"); E.salu("s_add_u32 s48, s48, s19"); E.salu("s_cmp_lg_u32 s48, 0")
        E.raw("    s_cbranch_scc1 L_exit2")
        E.salu("s_mov_b32 s46, 64"); E.salu("s_mov_b32 s47, 0x00020000")
        E.raw("    s_waitcnt lgkmcnt(0)")
        E.salu("s_not_b32 s40, s40")
        E.salu("s_mov_b64 exec, 1")
        E.valu("v_mov_b32", 1, "0"); E.valu("v_mov_b32", 2, "s40"); E.valu("v_mov_b32", 3, "s42")
        E.ins("buffer_atomic_umax v2, v1, s[44:47], 0 offen offset:8 sc1", "vmem", rd=[1, 2])
        E.ins("buffer_atomic_umax v3, v1, s[44:47], 0 offen offset:12 sc1", "vmem", rd=[1, 3])

def kdesc(name, vgpr, sgpr=102):
    acc = (vgpr + 3) // 4 * 4
    return f""".p2align 6
.amdhsa_kernel {name}
  .amdhsa_next_free_vgpr {vgpr}
  .amdhsa_next_free_sgpr {sgpr}
  .amdhsa_accum_offset {acc}
  .amdhsa_group_segment_fixed_size 0
  .amdhsa_kernarg_size 104
  .amdhsa_user_sgpr_count 2
  .amdhsa_user_sgpr_kernarg_segment_ptr 1
  .amdhsa_system_sgpr_workgroup_id_x 1
.end_amdhsa_kernel
"""

def generate(cfg):
    ref = open(f"cdna_kernels/{NAME}.s.ref").read().split("\n")
    hdr = [l for l in ref if l.startswith(";") and "@launch" not in l and "Override" not in l and "grid=ceil" not in l]
    out = "\n".join(hdr) + "\n"
    if cfg.only != 2: out += f"; @launch kernel={K1} grid=(256,1,1) block=(512,1,1) lds=163840\n"
    if cfg.only != 1: out += f"; @launch kernel={K2} grid=(672,1,1) block=(256,1,1) lds=0\n"
    out += '.amdgcn_target "amdgcn-amd-amdhsa--gfx950"\n.text\n'
    out += f".globl {K1}\n.p2align 8\n.type {K1},@function\n{K1}:\n"
    E = Emit(); prologue(E)
    st = (E.pos, dict(E.lastw), dict(E.sgpr_valu))
    compute(E, cfg)
    if cfg.prof:
        E.wait_vm(0); E.barrier()
    E.raw("    s_endpgm")
    E.label("L_loader")
    E.reset(); E.pos, E.lastw, E.sgpr_valu = st[0], dict(st[1]), dict(st[2])
    loader(E, cfg)
    E.label("L_exit")
    E.raw("    s_endpgm")
    out += E.text()
    out += f".globl {K2}\n.p2align 8\n.type {K2},@function\n{K2}:\n"
    E = Emit(); reduce_kernel(E, cfg)
    E.label("L_exit2")
    E.raw("    s_endpgm")
    out += E.text()
    out += '.section .rodata,"a"\n' + kdesc(K1, 256) + kdesc(K2, 56)
    return out

if __name__ == "__main__":
    import argparse
    ap = argparse.ArgumentParser()
    ap.add_argument("-o", default=f"cdna_kernels/{NAME}.s")
    ap.add_argument("--prof", action="store_true")
    ap.add_argument("--dump", default=None)
    ap.add_argument("--set", nargs="*", default=[])
    a = ap.parse_args()
    cfg = Cfg(); cfg.prof = a.prof; cfg.dump = a.dump
    for kv in a.set:
        k, v = kv.split("="); assert hasattr(cfg, k), k; setattr(cfg, k, eval(v))
    open(a.o, "w").write(generate(cfg))
```

```python
import sys, os
from collections import deque
sys.path.insert(0, os.path.dirname(os.path.abspath(__file__)))
from asmlib import *

NAME = "concat_heads__mha_block_cached__gqa_block_cached__near_ridge"
K1 = NAME + "_kernel"
K2 = "reduce_kernel"

SLOT = 33792
S_Q = [130048, 0, 62464, 96256]
X_Q = [33792, 46080]
KB = 62464
VB = 0
T_O = [101376, 0, 33792, 67584]
EXB = 135168
PART = 86016
PROF_OFF = 64 << 20
DUMP_OFF = 32 << 20
FLAG_OFF = 24 << 20
SPIN = 200000

sX, sWQ, sK, sV, sWO, sWS = 40, 44, 48, 52, 56, 60
sB, sP, sBR, sW, sROT, sHH, sRH, sLW = 64, 65, 66, 67, 68, 69, 70, 71
sT0, sT1, sT2, sT3 = 72, 73, 74, 75
sC = 76
sROTO = 88
sCH = 89
sMQ, sROW, sXK, sMX, sMO, sOC = 78, 79, 80, 81, 82, 83
sTM = 84
sGRP, sFL, sOUT, sDBG, sCNT, sHI = 90, 91, 92, 96, 100, 101

class Cfg:
    LA = 7
    DELAY = 2
    prof = False
    dump = None
    kv_sched = None
    noload = False
    nokv = False
    spread = True
    lprio = 0
    cprio = 0
    noexch = False
    only = 0
    LA2 = 5
    onelds = False
    xmode = "b64"
    DELAY2 = 2
    stflag = " sc1"
    kvflag = " nt"
    sched = None
    kv = [{"B0": 8, "B2": 8, "B4": 8, "B6": 8, "B8": 8, "B10": 8}]
    dbg = False
    dbgwg = 0
    fused = True
    outflag = ""

class Grp:
    def __init__(self, reads, mfmas, barrier=False, after=None, fill=None, pre=None):
        self.reads = reads; self.mfmas = mfmas; self.barrier = barrier; self.pre = pre
        self.after = after or []; self.fill = fill or []

class F:
    def __init__(self, fn, ready=-1, cost=1, dsw=False, due=1<<30):
        self.fn = fn; self.ready = ready; self.cost = cost; self.dsw = dsw; self.due = due

RING = 216
def ring(i): return RING + 4 * (i % 8)

def stream(E, groups, cfg, nxt=0, LA=None, DELAY=None):
    LA = cfg.LA if LA is None else LA
    DELAY = cfg.DELAY if DELAY is None else DELAY
    side = deque(); fill = deque()
    last_emit = [-100]
    n = len(groups)
    def try_queue(i, force=False):
        nonlocal nxt
        while nxt < n and nxt <= i + LA:
            H = groups[nxt]
            if H.barrier:
                must = force or nxt <= i
                if must:
                    while side: side.popleft()()
                    while any(f.dsw for f in fill): fill.popleft().fn()
                elif side or any(f.dsw for f in fill) or i < last_emit[0] + DELAY:
                    break
                if H.pre: H.pre()
                E.wait_lgkm(0); E.barrier(); H.barrier = False
                fill.extend(H.after)
            side.extend(H.reads); nxt += 1
    for i, G in enumerate(groups):
        if not G.mfmas: continue
        try_queue(i)
        assert nxt > i
        while any(f.due <= i for f in fill):
            f = fill.popleft(); assert f.ready < i; f.fn()
        fill.extend(G.fill)
        while any(r in side for r in G.reads): side.popleft()()
        for mf in G.mfmas:
            mf()
            budget = 2
            nrd = 1 if (cfg.spread and len(side) <= 3) else 2
            while budget > 0 and side and nrd > 0:
                side.popleft()(); budget -= 1; last_emit[0] = i; nrd -= 1
            while budget > 0 and fill and fill[0].ready < i:
                if cfg.onelds and fill[0].dsw:
                    if nrd <= 0:
                        break
                    nrd -= 1
                f = fill.popleft(); f.fn(); budget -= f.cost
                if f.dsw: last_emit[0] = i
    try_queue(n + 100, force=True)
    while side: side.popleft()()
    while fill: fill.popleft().fn()

def dump_regs(E, regs, tag):
    E.comment("dump " + tag)
    E.wait_lgkm(0)
    E.nop(16)
    E.salu(f"s_lshl_b32 s{sT0}, s2, 2", swr=[sT0])
    E.salu(f"s_add_u32 s{sT0}, s{sT0}, s{sW}", swr=[sT0])
    E.salu(f"s_mul_i32 s{sT0}, s{sT0}, {256*256}", swr=[sT0])
    E.salu(f"s_add_u32 s{sT0}, s{sT0}, {DUMP_OFF}", swr=[sT0])
    E.valu("v_lshlrev_b32", 254, "2", 255)
    for k, r in enumerate(regs):
        E.ins(f"buffer_store_dword v{r}, v254, s[{sWS}:{sWS+3}], s{sT0} offen", "vmem", rd=[r, 254])
        E.salu(f"s_add_u32 s{sT0}, s{sT0}, 256", swr=[sT0])
        if k % 32 == 31: E.wait_vm(0)
    E.wait_vm(0)

def prologue(E):
    E.salu("s_cmp_ge_u32 s2, 256")
    E.raw("    s_cbranch_scc1 L_exit")
    E.raw("    s_load_dwordx16 s[16:31], s[0:1], 0")
    E.raw("    s_load_dwordx8 s[32:39], s[0:1], 64")
    E.raw("    s_load_dwordx2 s[14:15], s[0:1], 96")
    E.valu("v_lshrrev_b32", 1, "6", 0)
    E.valu("v_and_b32", 255, "63", 0)
    E.salu(f"s_and_b32 s{sT0}, s2, 7")
    E.salu(f"s_lshr_b32 s{sBR}, s{sT0}, 2")
    E.salu(f"s_and_b32 s{sT0}, s{sT0}, 3")
    E.salu(f"s_lshr_b32 s{sT1}, s2, 3")
    E.salu(f"s_and_b32 s{sB}, s{sT1}, 15")
    E.salu(f"s_lshr_b32 s{sT1}, s{sT1}, 4")
    E.salu(f"s_lshl_b32 s{sP}, s{sT0}, 1")
    E.salu(f"s_add_u32 s{sP}, s{sP}, s{sT1}")
    E.ins(f"v_readfirstlane_b32 s{sW}, v1", "rfl", rd=[1], swr=[sW])
    E.salu(f"s_mul_i32 s{sT1}, s{sT1}, 3")
    E.salu(f"s_add_u32 s{sROT}, s{sB}, s{sT1}")
    for _ in range(2):
        E.salu(f"s_sub_u32 s{sT0}, s{sROT}, 7")
        E.salu(f"s_cmp_ge_u32 s{sROT}, 7")
        E.salu(f"s_cselect_b32 s{sROT}, s{sT0}, s{sROT}")
    E.salu(f"s_mov_b32 s{sROTO}, s{sB}")
    for _ in range(2):
        E.salu(f"s_sub_u32 s{sT0}, s{sROTO}, 7")
        E.salu(f"s_cmp_ge_u32 s{sROTO}, 7")
        E.salu(f"s_cselect_b32 s{sROTO}, s{sT0}, s{sROTO}")
    E.raw("    s_waitcnt lgkmcnt(0)")
    E.salu(f"s_cmp_eq_u32 s{sBR}, 0")
    for srd, a, b, nrec in ((sX, 16, 26, 1376256), (sK, 18, 28, 12582912), (sV, 20, 30, 12582912),
                            (sWQ, 22, 32, 3670016), (sWO, 24, 34, 3670016)):
        E.salu(f"s_cselect_b32 s{srd}, s{a}, s{b}")
        E.salu(f"s_cselect_b32 s{srd+1}, s{a+1}, s{b+1}")
        E.salu(f"s_mov_b32 s{srd+2}, {nrec}")
        E.salu(f"s_mov_b32 s{srd+3}, 0x00020000")
    E.salu(f"s_cmp_ge_u32 s{sW}, 4", srd=[sW])
    E.raw("    s_cbranch_scc1 L_loader")

def late_srds(E):
    for srd, a, nrec in ((sWS, 14, 0x10000000), (sOUT, 36, 2752512), (sDBG, 38, 256)):
        E.salu(f"s_mov_b32 s{srd}, s{a}")
        E.salu(f"s_mov_b32 s{srd+1}, s{a+1}")
        E.salu(f"s_mov_b32 s{srd+2}, {nrec}")
        E.salu(f"s_mov_b32 s{srd+3}, 0x00020000")
    E.salu(f"s_lshl_b32 s{sGRP}, s{sBR}, 4")
    E.salu(f"s_add_u32 s{sGRP}, s{sGRP}, s{sB}")
    E.salu(f"s_lshl_b32 s{sFL}, s{sGRP}, 10")
    E.salu(f"s_add_u32 s{sFL}, s{sFL}, {FLAG_OFF}")

class Red:
    nlab = 0
    def __init__(self, E, cfg, wv, base):
        self.E = E; self.cfg = cfg; self.wv = wv
        self.vR, self.vO, self.vF, self.vFA, self.t0 = base, base + 1, base + 2, base + 3, base + 4
        self.acc = base + 6
    def setup(self, L):
        E = self.E; vR, vO, t0, t1, wv = self.vR, self.vO, self.t0, self.t0 + 1, self.wv
        E.valu("v_and_b32", t0, "15", L)
        E.valu("v_mul_u32_u24", vO, "1792", t0)
        E.salu(f"s_and_b32 s{sT0}, s{sP}, 3")
        E.salu(f"s_mul_i32 s{sT0}, s{sT0}, 12")
        E.valu("v_add_u32", t0, f"s{sT0}", t0)
        E.valu("v_lshrrev_b32", t1, "4", t0)
        E.valu("v_and_b32", t0, "15", t0)
        E.valu("v_lshlrev_b32", t0, "4", t0)
        E.valu("v_lshl_add_u32", vR, t1, "10", t0)
        E.valu("v_and_b32", t0, "16", L)
        E.valu("v_lshl_add_u32", vR, t0, "4", vR)
        E.valu("v_lshrrev_b32", t0, "1", t0)
        E.valu("v_add_u32", vO, vO, t0)
        E.valu("v_and_b32", t0, "32", L)
        E.valu("v_add_u32", vO, vO, t0)
        E.valu("v_mul_u32_u24", t0, str(4 * PART // 32), t0)
        E.valu("v_add_u32", vR, vR, t0)
        E.salu(f"s_mul_i32 s{sT0}, s{sGRP}, {8 * PART}")
        E.salu(f"s_and_b32 s{sT1}, s{wv}, 2")
        E.salu(f"s_lshr_b32 s{sT2}, s{sP}, 2")
        E.salu(f"s_add_u32 s{sT2}, s{sT2}, s{sT1}")
        E.salu(f"s_mul_i32 s{sT2}, s{sT2}, 3072")
        E.salu(f"s_add_u32 s{sT0}, s{sT0}, s{sT2}")
        E.salu(f"s_and_b32 s{sT3}, s{wv}, 1")
        E.salu(f"s_lshl_b32 s{sT2}, s{sT3}, 9")
        E.salu(f"s_add_u32 s{sT0}, s{sT0}, s{sT2}")
        E.valu("v_add_u32", vR, f"s{sT0}", vR)
        E.salu(f"s_lshl_b32 s{sT0}, s{sB}, 3")
        E.salu(f"s_add_u32 s{sT0}, s{sT0}, s{sP}")
        E.salu(f"s_mul_i32 s{sT0}, s{sT0}, {12 * 1792}")
        E.salu(f"s_mul_i32 s{sT2}, s{sBR}, 896")
        E.salu(f"s_add_u32 s{sT0}, s{sT0}, s{sT2}")
        E.salu(f"s_lshl_b32 s{sT1}, s{sT1}, 5")
        E.salu(f"s_lshl_b32 s{sT3}, s{sT3}, 4")
        E.salu(f"s_add_u32 s{sT0}, s{sT0}, s{sT1}")
        E.salu(f"s_add_u32 s{sT0}, s{sT0}, s{sT3}")
        E.valu("v_add_u32", vO, f"s{sT0}", vO)
        E.valu("v_and_b32", t0, "31", L)
        E.valu("v_lshlrev_b32", self.vFA, "2", t0)
        E.salu(f"s_mov_b32 s{sHI}, 0xffff0000")
    def mask(self, on):
        if on:
            self.E.salu("s_mov_b32 exec_lo, 0x0fff0fff"); self.E.salu("s_mov_b32 exec_hi, 0x0fff0fff")
        else: self.E.salu("s_mov_b64 exec, -1")
    def spin(self, issue, test):
        E = self.E; n = Red.nlab; Red.nlab += 1
        test()
        E.raw(f"    s_cbranch_vccz L_ok{n}")
        import copy
        st = copy.deepcopy((E.vm, E.lgkm))
        E.salu(f"s_mov_b32 s{sCNT}, {SPIN}")
        E.label(f"L_sp{n}")
        issue()
        E.wait_vm(0)
        test()
        E.salu(f"s_sub_u32 s{sCNT}, s{sCNT}, 1")
        E.raw(f"    s_cbranch_scc1 L_ok{n}")
        E.raw(f"    s_cbranch_vccnz L_sp{n}")
        E.label(f"L_ok{n}")
        E.vm, E.lgkm = st
    def poll_dbg(self):
        E = self.E
        E.salu(f"s_lshl_b32 s{sT0}, s{sGRP}, 2")
        E.ins(f"buffer_load_dword v{self.vF}, off, s[{sDBG}:{sDBG+3}], s{sT0} offset:128 sc1", "vmem", wr=[self.vF])
    def check_dbg(self):
        self.spin(self.poll_dbg, lambda: self.E.ins(f"v_cmp_ne_u32 vcc, 8, v{self.vF}", "valu", rd=[self.vF]))
    def poll(self, c):
        self.E.ins(f"buffer_load_dword v{self.vF}, v{self.vFA}, s[{sWS}:{sWS+3}], s{sFL} offen offset:{c*128} sc1", "vmem",
                   rd=[self.vFA], wr=[self.vF])
    def check(self, c):
        self.spin(lambda: self.poll(c), lambda: self.E.ins(f"v_cmp_eq_u32 vcc, 0, v{self.vF}", "valu", rd=[self.vF]))
    def load(self, c, D, masked=False):
        E = self.E
        if not masked: self.mask(True)
        for k in range(4):
            E.salu(f"s_mov_b32 s{sT0}, {c * 12288 + k * PART}")
            E.ins(f"buffer_load_dwordx4 {vr(D+4*k,4)}, v{self.vR}, s[{sWS}:{sWS+3}], s{sT0} offen sc1", "vmem",
                  rd=[self.vR], wr=R(D + 4 * k, 4))
        if not masked: self.mask(False)
    def check_sent(self, c, D):
        E = self.E; t0 = self.t0
        def test():
            E.valu("v_max3_u32", t0, D, D + 1, D + 2)
            for k in range(3, 15, 2): E.valu("v_max3_u32", t0, t0, D + k, D + k + 1)
            E.valu("v_max_u32", t0, t0, D + 15)
            E.ins(f"v_cmp_eq_u32 vcc, -1, v{t0}", "valu", rd=[t0])
        self.mask(True)
        self.spin(lambda: self.load(c, D, True), test)
        self.mask(False)
    def sum(self, c, D):
        E = self.E; a = self.acc; t0 = self.t0
        self.mask(True)
        E.salu(f"s_add_u32 s{sT0}, s{sROTO}, {c}")
        E.salu(f"s_sub_u32 s{sT1}, s{sT0}, 7")
        E.salu(f"s_cmp_ge_u32 s{sT0}, 7")
        E.salu(f"s_cselect_b32 s{sT0}, s{sT1}, s{sT0}")
        E.salu(f"s_lshl_b32 s{sT0}, s{sT0}, 7")
        for k in range(4):
            for j in range(4):
                d = a + 2 * j if k == 0 else t0
                E.valu("v_lshlrev_b32", d, "16", D + 4 * k + j)
                E.valu("v_and_b32", d + 1, f"s{sHI}", D + 4 * k + j)
                if k:
                    E.ins(f"v_pk_add_f32 {vr(a+2*j,2)}, {vr(a+2*j,2)}, {vr(t0,2)}", "valu", rd=[a+2*j, a+2*j+1, t0, t0+1], wr=[a+2*j, a+2*j+1])
        for j in range(4):
            E.ins(f"v_permlane32_swap_b32 v{a+j}, v{a+4+j}", "perm", rd=[a+j, a+4+j], wr=[a+j, a+4+j])
        for j in (0, 2):
            E.ins(f"v_pk_add_f32 {vr(a+j,2)}, {vr(a+j,2)}, {vr(a+4+j,2)}", "valu", rd=[a+j, a+j+1, a+4+j, a+5+j], wr=[a+j, a+j+1])
        E.cvt(a, a, a + 1); E.cvt(a + 1, a + 2, a + 3)
        E.ins(f"buffer_store_dwordx2 {vr(a,2)}, v{self.vO}, s[{sOUT}:{sOUT+3}], s{sT0} offen{self.cfg.outflag}", "vmem",
              rd=[a, a + 1, self.vO], wide=True)
        self.mask(False)

aW = [248, 249, 250, 251]; aX = 252; aK = 253; aV = 254; vL = 255
XF = 192

def compute(E, cfg):
    L = vL
    if cfg.cprio: E.salu(f"s_setprio {cfg.cprio}")
    E.salu(f"s_lshr_b32 s{sHH}, s{sW}, 1", srd=[sW])
    E.salu(f"s_and_b32 s{sRH}, s{sW}, 1", srd=[sW])
    E.salu(f"s_mov_b32 s{sC}, 0x3db8aa3b")
    E.salu(f"s_mov_b32 s{sC+1}, 0x3db8aa3b")
    late_srds(E)
    sFLW = sMX
    if cfg.fused:
        E.salu(f"s_lshl_b32 s{sFLW}, s{sP}, 2")
        E.salu(f"s_add_u32 s{sFLW}, s{sFLW}, s{sW}")
        E.salu(f"s_lshl_b32 s{sFLW}, s{sFLW}, 2")
        E.salu(f"s_add_u32 s{sFLW}, s{sFLW}, s{sFL}")
        E.valu("v_mov_b32", 8, "0")
        E.valu("v_lshlrev_b32", 9, "7", L)
        E.salu("s_mov_b64 exec, 0xff")
        E.ins(f"buffer_store_dword v8, v9, s[{sWS}:{sWS+3}], s{sFLW} offen sc1", "vmem", rd=[8, 9])
        E.salu("s_mov_b64 exec, -1")
    def arrive():
        E.salu(f"s_cmp_lg_u32 s{sW}, 0")
        E.raw("    s_cbranch_scc1 L_noarr")
        E.salu(f"s_lshl_b32 s{sT0}, s{sGRP}, 2")
        E.salu("s_mov_b64 exec, 2")
        E.ins(f"buffer_atomic_add v{L}, off, s[{sDBG}:{sDBG+3}], s{sT0} offset:128 sc1", "vmem", rd=[L])
        E.salu("s_mov_b64 exec, -1")
        E.label("L_noarr")
    m, g, r, c4, btr, t1, t2 = 1, 2, 3, 4, 5, 6, 7
    E.valu("v_and_b32", m, "15", L)
    E.valu("v_lshrrev_b32", g, "4", L)
    E.valu("v_lshrrev_b32", r, "2", m)
    E.valu("v_and_b32", c4, "3", m)
    E.valu("v_and_b32", t1, "1", g)
    E.valu("v_lshlrev_b32", t1, "2", t1)
    E.valu("v_add_u32", t1, t1, r)
    E.valu("v_mul_u32_u24", btr, "1056", t1)
    E.valu("v_lshlrev_b32", t1, "3", c4)
    E.valu("v_add_u32", btr, btr, t1)
    E.valu("v_lshrrev_b32", t2, "1", g)
    E.valu("v_mul_u32_u24", t1, "16896", t2)
    E.valu("v_add_u32", t1, t1, btr)
    E.salu(f"s_lshl_b32 s{sT0}, s{sHH}, 9")
    for k in range(4):
        E.salu(f"s_add_u32 s{sT1}, s{sT0}, {S_Q[k]}")
        E.valu("v_add_u32", aW[k], f"s{sT1}", t1)
    E.salu(f"s_mul_i32 s{sT0}, s{sRH}, 3072")
    E.valu("v_lshlrev_b32", t1, "4", L)
    E.valu("v_add_u32", aX, f"s{sT0}", t1)
    E.salu(f"s_mul_i32 s{sT0}, s{sHH}, {96*528}")
    E.salu(f"s_add_u32 s{sT0}, s{sT0}, {KB}")
    E.valu("v_mul_u32_u24", t1, "528", m)
    E.valu("v_lshlrev_b32", aK, "3", g)
    E.valu("v_add_u32", aK, aK, t1)
    E.valu("v_add_u32", aK, f"s{sT0}", aK)
    E.salu(f"s_mul_i32 s{sT0}, s{sHH}, 25344")
    E.valu("v_lshlrev_b32", t1, "8", t2)
    E.valu("v_add_u32", t1, t1, btr)
    E.valu("v_add_u32", aV, f"s{sT0}", t1)

    def acc(t, rt): return (3 * t + rt) * 4
    def qf(s, rt): return 24 * s + 4 * rt
    def sacc(kt, rt): return 24 * kt + 12 + 4 * rt
    def tr(d, addr, off): return lambda: E.ds_read("ds_read_b64_tr_b16", d, 2, addr, off)
    def rd64(d, addr, off): return lambda: E.ds_read("ds_read_b64", d, 2, addr, off)
    def rd128(d, addr, off): return lambda: E.ds_read("ds_read_b128", d, 4, addr, off)
    def mf(d, a, b, c): return lambda: E.mfma(d, a, b, c)
    def cv(d, a, b): return lambda: E.cvt(d, a, b)

    groups = []
    for s in range(14):
        xs = XF + 12 * (s & 1)
        for t in range(16):
            gi = len(groups)
            reads = []
            if t == 0:
                reads += [rd128(xs + 4 * rt, aX, X_Q[(s >> 1) & 1] + (s & 1) * 6144 + rt * 1024) for rt in range(3)]
            reads += [tr(ring(gi) + 2 * i, aW[s % 4], i * 8448 + 32 * t) for i in range(2)]
            mfmas = [mf(acc(t, rt), ring(gi), xs + 4 * rt, None if s == 0 else acc(t, rt)) for rt in range(3)]
            fill = []
            if s == 13 and (t & 1) and cfg.dump != 'Q':
                sq = t >> 1
                for rt in range(3):
                    a0 = acc(t - 1, rt); a1 = acc(t, rt)
                    due = 224 + sq
                    fill += [F(cv(a0, a0, a0 + 1), gi, due=due), F(cv(a0 + 1, a0 + 2, a0 + 3), gi, due=due),
                             F(cv(a0 + 2, a1, a1 + 1), gi, due=due), F(cv(a0 + 3, a1 + 2, a1 + 3), gi, due=due)]
            hs = cfg.fused and s == 1 and t == 0
            groups.append(Grp(reads, mfmas, barrier=(t == 0), fill=fill, pre=(lambda: E.wait_vm(0)) if hs else None,
                              after=[F(arrive)] if hs else None))
    MX = [192, 194, 196]; TM = [193, 195, 197]
    if cfg.dump == 'Q':
        groups.append(Grp([], [], barrier=True))
        stream(E, groups, cfg)
        dump_regs(E, list(range(192)), 'Q')
        for _ in range(15, 39): E.barrier()
        return
    for kt in range(6):
        for s in range(8):
            gi = len(groups)
            reads = [rd64(ring(gi) + 2 * i, aK, kt * 8448 + 64 * s + 32 * i) for i in range(2)]
            mfmas = [mf(sacc(kt, rt), ring(gi), qf(s, rt), None if s == 0 else sacc(kt, rt)) for rt in range(3)]
            fill = []
            if s == 7:
                for rt in range(3):
                    a = sacc(kt, rt)
                    if kt == 0:
                        fill.append(F((lambda a=a, rt=rt: E.valu("v_max3_f32", MX[rt], a, a + 1, a + 2)), gi))
                        fill.append(F((lambda a=a, rt=rt: E.valu("v_max_f32", MX[rt], MX[rt], a + 3)), gi))
                    else:
                        fill.append(F((lambda a=a, rt=rt: E.valu("v_max3_f32", MX[rt], MX[rt], a, a + 1)), gi))
                        fill.append(F((lambda a=a, rt=rt: E.valu("v_max3_f32", MX[rt], MX[rt], a + 2, a + 3)), gi))
            groups.append(Grp(reads, mfmas, barrier=(kt == 0 and s == 0), fill=fill))
    groups.append(Grp([], [], barrier=True))
    stream(E, groups, cfg)
    if cfg.dump == 'S':
        dump_regs(E, list(range(200)), 'S')
        for _ in range(16, 39): E.barrier()
        return
    def xlane(regs, tmps, op):
        for pm in ("v_permlane32_swap_b32", "v_permlane16_swap_b32"):
            for rt in range(3): E.valu("v_mov_b32", tmps[rt], regs[rt])
            for rt in range(3):
                E.ins(f"{pm} v{regs[rt]}, v{tmps[rt]}", "perm", rd=[regs[rt], tmps[rt]], wr=[regs[rt], tmps[rt]])
            for rt in range(3): E.valu(op, regs[rt], regs[rt], tmps[rt])
    xlane(MX, TM, "v_max_f32")
    for rt in range(3): E.valu("v_mul_f32", MX[rt], f"s{sC}", MX[rt])
    aEw, aEr, aOo, aOp = 252, 253, 254, 255
    vSt = aEw
    E.valu("v_lshlrev_b32", TM[1], "4" if cfg.xmode == "b128" else "3", L)
    E.salu(f"s_mul_i32 s{sT1}, s{sW}, 3072")
    E.salu(f"s_add_u32 s{sT0}, s{sT1}, {EXB}")
    E.valu("v_add_u32", aEw, f"s{sT0}", TM[1])
    E.salu(f"s_xor_b32 s{sT2}, s{sW}, 2")
    E.salu(f"s_mul_i32 s{sT2}, s{sT2}, 3072")
    E.salu(f"s_add_u32 s{sT2}, s{sT2}, {EXB}")
    E.valu("v_add_u32", aEr, f"s{sT2}", TM[1])
    sST, sOo, sOp = sMQ, sROW, sXK
    E.salu(f"s_lshl_b32 s{sST}, s{sBR}, 4")
    E.salu(f"s_add_u32 s{sST}, s{sST}, s{sB}")
    E.salu(f"s_lshl_b32 s{sST}, s{sST}, 3")
    E.salu(f"s_add_u32 s{sST}, s{sST}, s{sP}")
    E.salu(f"s_mul_i32 s{sST}, s{sST}, {PART}")
    E.salu(f"s_add_u32 s{sST}, s{sST}, s{sT1}")
    if cfg.xmode != "b128": E.salu(f"s_lshl_b32 s{sT0}, s{sT0}, 1")
    E.salu(f"s_sub_u32 s{sST}, s{sST}, s{sT0}")
    E.salu(f"s_mul_i32 s{sOo}, s{sHH}, {25344 - 16896 - 64}")
    E.salu(f"s_sub_u32 s{sOo}, {67584 - 50688}, s{sOo}")
    E.salu(f"s_mul_i32 s{sOp}, s{sHH}, {25344 + 16896 - 64}")
    E.salu(f"s_sub_u32 s{sOp}, {67584 - 50688 + 16896}, s{sOp}")
    if cfg.fused: E.salu(f"s_mov_b32 s{sCH}, 0")
    else: E.salu(f"s_mul_i32 s{sCH}, s{sROTO}, 12288")
    def pf(s, rt): return sacc(2 * s, rt)
    SM = [198, 200, 202]
    def pk(op, d, *srcs, extra=""):
        rd = []; ops = []
        for x in srcs:
            if isinstance(x, int): rd += [x, x + 1]; ops.append(vr(x, 2))
            else: ops.append(x)
        E.ins(f"{op} {vr(d,2)}, " + ", ".join(ops) + (" " + extra if extra else ""), "valu", rd=rd, wr=[d, d + 1])
    def exp_tile(kt, rt):
        a = sacc(kt, rt)
        for k in (0, 2):
            pk("v_pk_fma_f32", a + k, a + k, f"s[{sC}:{sC+1}]", MX[rt], extra="op_sel_hi:[1,1,0] neg_lo:[0,0,1] neg_hi:[0,0,1]")
        for k in range(4): E.valu("v_exp_f32", a + k, a + k, kind="trans")
    def sum_tile(kt, rt):
        a = sacc(kt, rt)
        if kt == 0: pk("v_pk_add_f32", SM[rt], a, a + 2)
        else:
            pk("v_pk_add_f32", SM[rt], SM[rt], a); pk("v_pk_add_f32", SM[rt], SM[rt], a + 2)

    R6 = 216
    def ring6(i): return R6 + 4 * (i % 6)
    groups2 = []
    OT = [156, 180]
    OPAR = [36, 84, 132, 192, 204, 240, 108, 156]
    ACC = [12, 60]; TMP = 180
    def oacc(t, rt): return qf(t >> 1, rt) if (t & 1) == 0 else OT[(t >> 1) & 1] + 4 * rt
    def xw(q):
        fl = []
        if cfg.xmode == "none": return fl
        if cfg.xmode == "b128":
            for rt in range(3):
                fl.append(F((lambda a=qf(q, rt), o=(q & 1) * 12288 + rt * 1024:
                             E.ds_write("ds_write_b128", aEw, a, 4, o)), 6 * q + 5, dsw=True))
            return fl
        for rt in range(3):
            for h in range(2):
                fl.append(F((lambda a=qf(q, rt) + 2 * h, o=(q & 1) * 12288 + rt * 1024 + h * 512:
                             E.ds_write("ds_write_b64", aEw, a, 2, o)), 6 * q + 5, dsw=True))
        return fl
    def xr(q):
        fl = []
        if cfg.xmode in ("none", "wonly"): return fl
        if cfg.xmode == "b128":
            for rt in range(3):
                fl.append(F(rd128(OPAR[q] + 4 * rt, aEr, (q & 1) * 12288 + rt * 1024), -1, dsw=True))
            return fl
        for rt in range(3):
            d = OPAR[q] + 4 * rt; o = (q & 1) * 24 + 2 * rt
            fl.append(F((lambda d=d, o=o: E.ins(f"ds_read2st64_b64 {vr(d,4)}, v{aEr} offset0:{o} offset1:{o+1}", "ds",
                                               rd=[aEr], wr=R(d, 4))), -1, dsw=True))
        return fl
    def after_p(k):
        return (xr(k - 3) if 3 <= k <= 10 else []) + (xw(k - 2) if 2 <= k <= 9 else [])
    for t in range(16):
        for s in range(3):
            gi = len(groups2)
            reads = []
            if t == 8 and s == 0: reads.append(lambda: E.valu("v_add_u32", aV, "50688", aV))
            reads += [tr(ring6(gi) + 2 * i, aV, s * 8448 + i * 512 + 32 * (t & 7)) for i in range(2)]
            mfmas = [mf(oacc(t, rt), ring6(gi), pf(s, rt), None if s == 0 else oacc(t, rt)) for rt in range(3)]
            fill = []
            if s == 2 and (t & 1):
                for rt in range(3):
                    a0 = oacc(t - 1, rt); a1 = oacc(t, rt)
                    due = min(3 * (t + 4), 48 + 16)
                    fill += [F(cv(a0, a0, a0 + 1), gi, due=due), F(cv(a0 + 1, a0 + 2, a0 + 3), gi, due=due),
                             F(cv(a0 + 2, a1, a1 + 1), gi, due=due), F(cv(a0 + 3, a1 + 2, a1 + 3), gi, due=due)]
            k = t >> 1
            bar = (s == 0 and (t & 1) == 0 and k >= 2)
            groups2.append(Grp(reads, mfmas, barrier=bar, after=after_p(k) if bar else None, fill=fill))
    for kt in range(6):
        for rt in range(3): exp_tile(kt, rt)
        if kt >= 1:
            for rt in range(3): sum_tile(kt - 1, rt)
    for rt in range(3): sum_tile(5, rt)
    for rt in range(3): E.valu("v_add_f32", SM[rt], SM[rt], SM[rt] + 1)
    xlane(SM, TM, "v_add_f32")
    E.barrier()
    for gi in range(cfg.LA2):
        for rdf in groups2[gi].reads: rdf()
    for rt in range(3): E.valu("v_rcp_f32", SM[rt], SM[rt], kind="trans")
    for s in range(3):
        for rt in range(3):
            a0 = sacc(2 * s, rt); a1 = sacc(2 * s + 1, rt)
            for a in (a0, a0 + 2, a1, a1 + 2): pk("v_pk_mul_f32", a, a, SM[rt], extra="op_sel_hi:[1,0]")
            E.cvt(a0, a0, a0 + 1); E.cvt(a0 + 1, a0 + 2, a0 + 3)
            E.cvt(a0 + 2, a1, a1 + 1); E.cvt(a0 + 3, a1 + 2, a1 + 3)
    for j in range(14):
        c, kh = j >> 1, j & 1
        toff = T_O[j % 4] - (67584 if T_O[j % 4] >= 67584 else 0)
        order = [(par, 2 * kp + e, u) for par in range(2) for kp in range(2) for u in range(2) for e in range(2)]
        for n_, (par, ks, u) in enumerate(order):
            gi = len(groups2)
            blk, sp = ks >> 1, ks & 1
            reads = []
            if n_ == 0:
                if j == 0:
                    reads += [lambda: E.valu("v_add_u32", aOp, f"s{sOp}", aV), lambda: E.valu("v_add_u32", aOo, f"s{sOo}", aV)]
                elif j % 4 == 1:
                    reads += [lambda: E.valu("v_subrev_u32", aOo, "67584", aOo), lambda: E.valu("v_subrev_u32", aOp, "67584", aOp)]
                elif j % 4 == 3:
                    reads += [lambda: E.valu("v_add_u32", aOo, "67584", aOo), lambda: E.valu("v_add_u32", aOp, "67584", aOp)]
            reads += [tr(ring6(gi) + 2 * i, aOp if par else aOo, toff + blk * 8448 + sp * 512 + i * 128 + 32 * u) for i in range(2)]
            s = 4 * kh + ks
            first = (kh == 0 and par == 0 and ks == 0)
            mfmas = [mf(ACC[u] + 4 * rt, ring6(gi), (OPAR[s] + 4 * rt) if par else qf(s, rt),
                        None if first else ACC[u] + 4 * rt) for rt in range(3)]
            fill = []
            if kh == 1 and par == 1 and ks == 3:
                due = gi + 3
                for rt in range(3):
                    a = ACC[u] + 4 * rt; d = TMP + 4 * rt + 2 * u
                    fill += [F(cv(d, a, a + 1), gi, due=due), F(cv(d + 1, a + 2, a + 3), gi, due=due)]
                if cfg.fused and c >= 5:
                    for rt in range(3):
                        for d in (TMP + 4 * rt + 2 * u, TMP + 4 * rt + 2 * u + 1):
                            fill.append(F((lambda d=d: E.valu("v_min_u32", d, "-2", d)), gi))
                if u == 1 and cfg.fused and 1 <= c <= 5:
                    def flag(cc=c - 1):
                        E.wait_vm(0)
                        E.salu("s_mov_b64 exec, 1")
                        E.ins(f"buffer_store_dword v{aOp}, off, s[{sWS}:{sWS+3}], s{sFLW} offset:{cc*128} sc1", "vmem", rd=[aOp])
                        E.salu("s_mov_b64 exec, -1")
                    fill.append(F(flag, gi + 1))
                if u == 1:
                    for rt in range(3):
                        def st(rt=rt):
                            E.ins(f"buffer_store_dwordx4 {vr(TMP+4*rt,4)}, v{vSt}, s[{sWS}:{sWS+3}], s{sCH} offen offset:{rt*1024}{cfg.stflag}",
                                  "vmem", rd=R(TMP + 4 * rt, 4) + [vSt], wide=True)
                        fill.append(F(st, gi + 2 + 2 * rt))
                    def adv():
                        E.salu(f"s_add_u32 s{sCH}, s{sCH}, 12288")
                        E.salu(f"s_cmp_ge_u32 s{sCH}, {PART}")
                        E.salu(f"s_cselect_b32 s{sCH}, 0, s{sCH}")
                    fill.append(F(adv, gi))
            bar = (n_ == 0); after = None
            if j == 0 and n_ == 0: after = after_p(8)
            if j == 0 and n_ == 6: bar = True; after = after_p(9)
            if j == 0 and n_ == 10:
                bar = True
                after = after_p(10) + [F(lambda: E.valu("v_lshl_add_u32", vSt, aEw, "0" if cfg.xmode == "b128" else "1", f"s{sST}"))]
            groups2.append(Grp(reads, mfmas, barrier=bar, after=after, fill=fill))
    stream(E, groups2, cfg, nxt=cfg.LA2, LA=cfg.LA2, DELAY=cfg.DELAY2)
    if cfg.fused:
        E.valu("v_mbcnt_lo_u32_b32", 40, "-1", "0")
        E.valu("v_mbcnt_hi_u32_b32", 40, "-1", 40)
        rd_ = Red(E, cfg, sW, 20); rd_.setup(40)
        rd_.load(6, 44); rd_.check_sent(6, 44); rd_.sum(6, 44)

BARS = [f"B{i}" for i in range(17)] + [f"P{k}" for k in range(2, 11)] + [f"O{j}" for j in range(1, 14)]

def default_sched(cfg, var):
    S = {"pre": ["X0", "W0"], "B0": ["W1", "X1", "W2"], "B1": ["W3", "W4"]}
    for s in range(1, 10):
        a = []
        if s & 1: a.append(f"X{(s + 1) // 2 + 1}")
        a.append(f"W{s + 4}")
        S[f"B{s+1}"] = S.get(f"B{s+1}", []) + a
    for b, n in cfg.kv[var].items():
        S[b] = S.get(b, []) + [f"KV{n}"]
    S["B11"] = ["wK0"] + S.get("B11", []); S["B12"] = ["wK1", "T0"] + S.get("B12", []); S["B13"] = ["wK2", "T1"] + S.get("B13", [])
    S["B14"] = S.get("B14", []) + ["KV48", "wV0"]
    S["B15"] = ["wT0", "wV1"]
    for k in range(4): S[f"P{4+k}"] = [f"wT1:{2*k}:{2*k+2}"]
    S["P10"] = ["O2", "O3"]
    for j in range(1, 11): S[f"O{j}"] = [f"O{j+3}"]
    if cfg.fused:
        S["P2"] = ["clr0"]
        pre = {"O3": ["rs0"], "O4": ["pd0"], "O5": ["cd0"]}
        for c in range(4):
            pre.setdefault(f"O{2*c+6}", []).append(f"rp{c}")
            pre.setdefault(f"O{2*c+7}", []).append(f"rl{c}")
            if c < 3: S[f"O{2*c+8}"] = S.get(f"O{2*c+8}", []) + [f"rsum{c}"]
        for b, a in pre.items(): S[b] = a + S.get(b, [])
        S["O13"] += ["rtail0"]
    return S

def needs(b):
    if b[0] == "B":
        s = int(b[1:])
        if s <= 13:
            t = {("W", s), ("X", s // 2)}
            if s == 11: t |= {("W", 12), ("W", 13), ("X", 6)}
            return t
    if b[0] == "O": return {("O", int(b[1:])), "clr"}
    return set()

def loader(E, cfg):
    L = vL
    vW, vX, vKV, vVV, vO, aKw, aVw, vT0, vT1, t1, t2, aTw = 200, 201, 202, 203, 204, 205, 206, 207, 208, 209, 210, 211
    if cfg.lprio: E.salu(f"s_setprio {cfg.lprio}")
    E.salu(f"s_sub_u32 s{sLW}, s{sW}, 4", srd=[sW])
    lw = sLW
    if cfg.prof:
        E.valu("v_mov_b32", vT0, "0"); E.valu("v_mov_b32", vT1, "0")
        E.raw(f"    s_memtime s[{sTM}:{sTM+1}]")
        E.raw(f"    s_memrealtime s[{sTM+2}:{sTM+3}]")
        E.raw("    s_waitcnt lgkmcnt(0)")
        E.ins(f"v_writelane_b32 v{vT0}, s{sTM}, 62", "valu", wr=[vT0])
        E.ins(f"v_writelane_b32 v{vT1}, s{sTM+2}, 62", "valu", wr=[vT1])
    E.valu("v_lshlrev_b32", t1, "4", L)
    E.salu(f"s_lshl_b32 s{sT0}, s{sP}, 10")
    E.salu(f"s_lshl_b32 s{sT1}, s{lw}, 16")
    E.salu(f"s_add_u32 s{sT0}, s{sT0}, s{sT1}")
    E.valu("v_add_u32", vW, f"s{sT0}", t1)
    E.salu(f"s_lshr_b32 s{sT2}, s{lw}, 1")
    E.salu(f"s_and_b32 s{sT3}, s{lw}, 1")
    E.salu(f"s_mul_i32 s{sMQ}, s{sT2}, 16896")
    E.salu(f"s_mul_i32 s{sT0}, s{sT3}, 4224")
    E.salu(f"s_add_u32 s{sMQ}, s{sMQ}, s{sT0}")
    E.salu(f"s_mul_i32 s{sROW}, s{sROT}, {2*262144}")
    E.salu(f"s_mul_i32 s{sXK}, s{sROT}, 128")
    E.salu(f"s_mul_i32 s{sMX}, s{lw}, 3072")
    E.salu(f"s_mul_i32 s{sT0}, s{sB}, 86016")
    E.salu(f"s_mul_i32 s{sT1}, s{sT3}, {48*896}")
    E.salu(f"s_add_u32 s{sT0}, s{sT0}, s{sT1}")
    E.salu(f"s_lshl_b32 s{sT1}, s{sT2}, 6")
    E.salu(f"s_add_u32 s{sT0}, s{sT0}, s{sT1}")
    E.valu("v_and_b32", t2, "15", L)
    E.valu("v_mul_u32_u24", vX, "896", t2)
    E.valu("v_and_b32", t2, "48", L)
    E.valu("v_add_u32", vX, vX, t2)
    E.valu("v_add_u32", vX, f"s{sT0}", vX)

    def dma(srd, voff, m0expr, soffexpr, tag):
        if cfg.noload: return
        E.salu(f"s_add_u32 m0, {m0expr}", swr=["m0"])
        E.salu(f"s_add_u32 s{sT0}, {soffexpr}")
        E.ins(f"buffer_load_dwordx4 v{voff}, s[{srd}:{srd+3}], s{sT0} offen lds", "dma", rd=[voff], tag=tag)
    def ldW(s):
        for i in range(8):
            dma(sWQ, vW, f"s{sMQ}, {S_Q[s % 4] + (8 * (i >> 2) + (i & 3)) * 1056}", f"s{sROW}, {i * 8192}", ("W", s))
        E.salu(f"s_add_u32 s{sROW}, s{sROW}, 262144")
        E.salu(f"s_cmp_ge_u32 s{sROW}, {14*262144}")
        E.salu(f"s_cselect_b32 s{sROW}, 0, s{sROW}")
    def ldX(u):
        for i in range(3):
            dma(sX, vX, f"s{sMX}, {X_Q[u & 1] + i * 1024}", f"s{sXK}, {i * 14336}", ("X", u))
        E.salu(f"s_add_u32 s{sXK}, s{sXK}, 128")
        E.salu(f"s_cmp_ge_u32 s{sXK}, 896")
        E.salu(f"s_cselect_b32 s{sXK}, 0, s{sXK}")
    ldX(0); ldW(0)
    late_srds(E)
    E.salu(f"s_lshl_b32 s{sT1}, s{sB}, 3")
    E.salu(f"s_add_u32 s{sT1}, s{sT1}, s{sP}")
    E.salu(f"s_mul_i32 s{sT1}, s{sT1}, 98304")
    E.salu(f"s_lshl_b32 s{sT0}, s{lw}, 13")
    E.salu(f"s_add_u32 s{sT0}, s{sT0}, s{sT1}")
    E.valu("v_add_u32", vKV, f"s{sT0}", t1)
    E.salu(f"s_mul_i32 s{sMO}, s{lw}, 8448")
    E.salu(f"s_add_u32 s{sT0}, s{sMO}, {T_O[0]}")
    E.valu("v_add_u32", aTw, f"s{sT0}", t1)
    E.valu("v_and_b32", aKw, "0x1f0", t1)
    E.valu("v_lshrrev_b32", t2, "5", L)
    E.valu("v_mul_u32_u24", t2, "528", t2)
    E.valu("v_add_u32", aKw, aKw, t2)
    E.salu(f"s_add_u32 s{sT0}, s{sMO}, {KB}")
    E.valu("v_add_u32", aKw, f"s{sT0}", aKw)
    E.valu("v_and_b32", t1, "0xf0", t1)
    E.valu("v_lshrrev_b32", t2, "4", L)
    E.valu("v_lshl_add_u32", vVV, t2, "9", t1)
    E.salu(f"s_lshl_b32 s{sT0}, s{lw}, 11")
    E.salu(f"s_add_u32 s{sT0}, s{sT0}, s{sT1}")
    E.valu("v_add_u32", vVV, f"s{sT0}", vVV)
    E.valu("v_mul_u32_u24", aVw, "1056", t2)
    E.valu("v_add_u32", aVw, aVw, t1)
    E.salu(f"s_mul_i32 s{sT0}, s{sT3}, 4224")
    E.salu(f"s_lshl_b32 s{sT1}, s{sT2}, 8")
    E.salu(f"s_add_u32 s{sT0}, s{sT0}, s{sT1}")
    E.valu("v_add_u32", aVw, f"s{sT0}", aVw)
    E.salu(f"s_lshl_b32 s{sT0}, s{sP}, 9")
    E.salu(f"s_lshl_b32 s{sT1}, s{sT2}, 8")
    E.salu(f"s_add_u32 s{sT0}, s{sT0}, s{sT1}")
    E.salu(f"s_lshl_b32 s{sT1}, s{sT3}, 6")
    E.salu(f"s_add_u32 s{sT0}, s{sT0}, s{sT1}")
    E.salu(f"s_mul_i32 s{sT0}, s{sT0}, 896")
    E.valu("v_and_b32", t1, "32", L)
    E.valu("v_and_b32", t2, "8", L)
    E.valu("v_lshl_add_u32", t1, t2, "1", t1)
    E.valu("v_and_b32", t2, "16", L)
    E.valu("v_lshrrev_b32", t2, "1", t2)
    E.valu("v_add_u32", t1, t1, t2)
    E.valu("v_mul_u32_u24", vO, "896", t1)
    E.valu("v_and_b32", t2, "7", L)
    E.valu("v_lshl_add_u32", vO, t2, "4", vO)
    E.valu("v_add_u32", vO, f"s{sT0}", vO)
    E.salu(f"s_mul_i32 s{sOC}, s{sROTO}, 128")

    nvar = len(cfg.kv)
    if nvar > 1:
        E.salu(f"s_lshr_b32 s{sT0}, s2, 3")
        E.salu(f"s_and_b32 s{sT0}, s{sT0}, {nvar-1}")
        for v in range(1, nvar):
            E.salu(f"s_cmp_eq_u32 s{sT0}, {v}")
            E.raw(f"    s_cbranch_scc1 L_lv{v}")
    import copy
    st0 = copy.deepcopy((E.pos, E.lastw, E.sgpr_valu, E.vm, E.lgkm, E.store_data, E.m0_pos))
    for var in range(nvar):
        if var:
            E.label(f"L_lv{var}")
            E.pos, E.lastw, E.sgpr_valu, E.vm, E.lgkm, E.store_data, E.m0_pos = copy.deepcopy(st0)
        kvn = [0]
        def ldKV(n):
            if cfg.noload or cfg.nokv: return
            for _ in range(n):
                j = kvn[0]
                if j >= 48: return
                kvn[0] += 1
                if j < 24:
                    off = (j >> 3) * 32768 + (j & 7) * 1024; srd = sK; vo = vKV
                else:
                    jj = j - 24
                    off = (jj % 12) * 8192 + (jj // 12) * 256; srd = sV; vo = vVV
                E.salu(f"s_mov_b32 s{sT1}, {off & ~4095}")
                E.ins(f"buffer_load_dwordx4 {vr(4*j,4)}, v{vo}, s[{srd}:{srd+3}], s{sT1} offen offset:{off & 4095}{cfg.kvflag}",
                      "vmem", rd=[vo], wr=R(4 * j, 4), tag=("KV", j))
        def wrK(third, a=0, b=8):
            if cfg.noload or cfg.nokv: return
            for i in range(a, b):
                E.ds_write("ds_write_b128", aKw, 4 * (8 * third + i), 4, i * 1056)
            if third < 2 and b == 8: E.valu("v_add_u32", aKw, str(SLOT), aKw)
        def wrV(dh, a=0, b=12):
            if cfg.noload or cfg.nokv: return
            for j in range(a, b):
                E.ds_write("ds_write_b128", aVw, 96 + 4 * (12 * dh + j), 4, (j >> 1) * 8448 + (j & 1) * 512)
            if dh == 0 and b == 12: E.valu("v_add_u32", aVw, "50688", aVw)
        def ldO(j, regs=False):
            kh = j & 1
            for i in range(8):
                if regs:
                    if cfg.noload: continue
                    d = 32 * j + 4 * i
                    E.salu(f"s_add_u32 s{sT0}, s{sOC}, {(128 * kh + i) * 896}")
                    E.ins(f"buffer_load_dwordx4 {vr(d,4)}, v{vO}, s[{sWO}:{sWO+3}], s{sT0} offen", "vmem", rd=[vO], wr=R(d, 4), tag=("T", j))
                else:
                    dma(sWO, vO, f"s{sMO}, {T_O[j % 4] + i * 1056}", f"s{sOC}, {(128 * kh + i) * 896}", ("O", j))
            if kh:
                E.salu(f"s_add_u32 s{sOC}, s{sOC}, 128")
                E.salu(f"s_cmp_ge_u32 s{sOC}, 896")
                E.salu(f"s_cselect_b32 s{sOC}, 0, s{sOC}")
        def wrT(j, a=0, b=8):
            if cfg.noload: return
            for i in range(a, b):
                E.ds_write("ds_write_b128", aTw, 32 * j + 4 * i, 4, i * 1056)
            if j == 0 and b == 8: E.valu("v_subrev_u32", aTw, str(T_O[0] - T_O[1]), aTw)
        def prio(n): E.salu(f"s_setprio {n}")
        rd_ = Red(E, cfg, lw, 64)
        RD = [80, 96, 112]
        def clr(_):
            for k in range(4): E.valu("v_mov_b32", 128 + k, "-1")
            E.valu("v_lshlrev_b32", 132, "4", L)
            E.salu(f"s_lshl_b32 s{sT0}, s{sGRP}, 3")
            E.salu(f"s_add_u32 s{sT0}, s{sT0}, s{sP}")
            E.salu(f"s_mul_i32 s{sT0}, s{sT0}, {PART}")
            E.salu(f"s_add_u32 s{sT0}, s{sT0}, s{sMX}")
            for c in (5, 6):
                E.salu(f"s_add_u32 s{sT1}, s{sT0}, {c * 12288}")
                for rt in range(3):
                    E.ins(f"buffer_store_dwordx4 v[128:131], v132, s[{sWS}:{sWS+3}], s{sT1} offen offset:{rt*1024} sc1", "vmem",
                          rd=[128, 129, 130, 131, 132], tag="clr")
        def rl(c): rd_.check(c); rd_.load(c, RD[0])
        def rtail(_):
            rd_.poll(4); rd_.load(5, RD[1])
            rd_.sum(3, RD[0])
            rd_.check(4); rd_.load(4, RD[2])
            rd_.check_sent(5, RD[1]); rd_.sum(5, RD[1])
            rd_.sum(4, RD[2])
        def act(a):
            if a in ("X0", "W0"): return
            a, *rng = a.split(":")
            n = int(re.search(r"\d+", a).group(0)); k = a.rstrip("0123456789")
            {"X": ldX, "W": ldW, "KV": ldKV, "wK": wrK, "wV": wrV, "O": ldO, "T": lambda j: ldO(j, True), "wT": wrT,
             "prio": prio, "clr": clr, "rs": lambda _: rd_.setup(L), "pd": lambda _: rd_.poll_dbg(), "cd": lambda _: rd_.check_dbg(),
             "rp": rd_.poll, "rl": rl, "rsum": lambda c: rd_.sum(c, RD[0]), "rtail": rtail}[k](n, *map(int, rng))
        S = (cfg.sched or default_sched)(cfg, var)
        for a in S.get("pre", []): act(a)
        lazy = {"B15", "P2", "P3", "P5", "P6", "P7", "P9"}
        for nb, b in enumerate(BARS):
            E.wait_vm_tag(needs(b))
            if b not in lazy: E.wait_lgkm(0)
            if cfg.prof:
                E.raw(f"    s_memtime s[{sTM}:{sTM+1}]")
                E.raw("    s_waitcnt lgkmcnt(0)"); E.lgkm = []
                E.ins(f"v_writelane_b32 v{vT0}, s{sTM}, {nb}", "valu", wr=[vT0])
            E.barrier()
            if cfg.prof:
                E.raw(f"    s_memtime s[{sTM+2}:{sTM+3}]")
                E.raw("    s_waitcnt lgkmcnt(0)"); E.lgkm = []
                E.ins(f"v_writelane_b32 v{vT1}, s{sTM+2}, {nb}", "valu", wr=[vT1])
            for a in S.get(b, []): act(a)
        if var < nvar - 1: E.raw("    s_branch L_lend")
    E.label("L_lend")
    if cfg.prof:
        E.raw("    s_barrier")
        E.raw(f"    s_memtime s[{sTM}:{sTM+1}]")
        E.raw(f"    s_memrealtime s[{sTM+2}:{sTM+3}]")
        E.raw("    s_waitcnt lgkmcnt(0)")
        E.ins(f"v_writelane_b32 v{vT1}, s{sTM}, {len(BARS)}", "valu", wr=[vT1])
        E.ins(f"v_writelane_b32 v{vT0}, s{sTM}, {len(BARS)}", "valu", wr=[vT0])
        E.ins(f"v_writelane_b32 v{vT1}, s{sTM+2}, 63", "valu", wr=[vT1])
        E.salu(f"s_lshl_b32 s{sT0}, s2, 2")
        E.salu(f"s_add_u32 s{sT0}, s{sT0}, s{lw}")
        E.salu(f"s_lshl_b32 s{sT0}, s{sT0}, 9")
        E.salu(f"s_add_u32 s{sT0}, s{sT0}, {PROF_OFF}")
        E.valu("v_lshlrev_b32", t1, "2", L)
        E.ins(f"buffer_store_dword v{vT0}, v{t1}, s[{sWS}:{sWS+3}], s{sT0} offen", "vmem", rd=[vT0, t1])
        E.ins(f"buffer_store_dword v{vT1}, v{t1}, s[{sWS}:{sWS+3}], s{sT0} offen offset:256", "vmem", rd=[vT1, t1])
        if cfg.dbg: dbg_tail(E, cfg, vT0, vT1, t1, t2, lw)

def dbg_tail(E, cfg, vT0, vT1, t1, t2, lw):
    sel = [0, 1, 4, 8, 11, 14, 15, 16, 23, 26, 32, 39]
    E.salu(f"s_cmp_lg_u32 s{lw}, 0")
    E.raw("    s_cbranch_scc1 L_exit")
    E.raw("    s_load_dwordx2 s[88:89], s[0:1], 88")
    E.salu("s_mov_b32 s90, 64"); E.salu("s_mov_b32 s91, 0x00020000")
    E.ins(f"v_readlane_b32 s92, v{vT0}, 62", "rfl", rd=[vT0], swr=[92])
    E.ins(f"v_readlane_b32 s93, v{vT1}, 62", "rfl", rd=[vT1], swr=[93])
    E.ins(f"v_readlane_b32 s94, v{vT1}, 63", "rfl", rd=[vT1], swr=[94])
    E.valu("v_mov_b32", t2, "0")
    for i, b in enumerate(sel):
        E.ins(f"v_readlane_b32 s95, v{vT1}, {b}", "rfl", rd=[vT1], swr=[95])
        E.salu("s_sub_u32 s96, s95, s92", srd=[95, 92], swr=[96])
        E.ins(f"v_writelane_b32 v{t2}, s96, {i}", "valu", wr=[t2], rd=[t2])
    E.raw("    s_waitcnt lgkmcnt(0)")
    E.salu("s_add_u32 s88, s88, 512"); E.salu("s_addc_u32 s89, s89, 0")
    E.salu(f"s_cmp_lg_u32 s2, {cfg.dbgwg}")
    E.raw("    s_cbranch_scc1 L_dbg1")
    E.valu("v_lshlrev_b32", t1, "2", vL)
    E.ins(f"buffer_store_dword v{t2}, v{t1}, s[88:91], 0 offen offset:16", "vmem", rd=[t1, t2])
    E.label("L_dbg1")
    E.salu("s_not_b32 s93, s93", srd=[93])
    E.salu("s_mov_b64 exec, 1")
    E.valu("v_mov_b32", t1, "0")
    E.valu("v_mov_b32", vT0, "s93")
    E.valu("v_mov_b32", vT1, "s94")
    E.ins(f"buffer_atomic_umax v{vT0}, v{t1}, s[88:91], 0 offen sc1", "vmem", rd=[vT0, t1])
    E.ins(f"buffer_atomic_umax v{vT1}, v{t1}, s[88:91], 0 offen offset:4 sc1", "vmem", rd=[vT1, t1])

def reduce_kernel(E, cfg):
    E.salu("s_cmp_ge_u32 s2, 672")
    E.raw("    s_cbranch_scc1 L_exit2")
    E.raw("    s_load_dwordx2 s[4:5], s[0:1], 80")
    E.raw("    s_load_dwordx2 s[6:7], s[0:1], 96")
    if cfg.dbg:
        E.raw("    s_memrealtime s[40:41]")
        E.raw("    s_load_dwordx2 s[44:45], s[0:1], 88")
    E.salu("s_mul_i32 s16, s2, 3121")
    E.salu("s_lshr_b32 s16, s16, 16")
    E.salu("s_mul_i32 s17, s16, 21")
    E.salu("s_sub_u32 s17, s2, s17")
    E.valu("v_lshrrev_b32", 1, "6", 0)
    E.salu("s_mul_i32 s18, s16, %d" % (8 * PART))
    E.ins("v_readfirstlane_b32 s19, v1", "rfl", rd=[1], swr=[19])
    E.salu("s_lshl_b32 s20, s17, 12")
    E.salu("s_add_u32 s18, s18, s20")
    E.valu("v_lshlrev_b32", 2, "4", 0)
    E.raw("    s_waitcnt lgkmcnt(0)")
    E.salu("s_mov_b32 s8, s6"); E.salu("s_mov_b32 s9, s7"); E.salu("s_mov_b32 s10, 0x10000000"); E.salu("s_mov_b32 s11, 0x00020000")
    E.salu("s_mov_b32 s12, s4"); E.salu("s_mov_b32 s13, s5"); E.salu("s_mov_b32 s14, 2752512"); E.salu("s_mov_b32 s15, 0x00020000")
    for p in range(8):
        E.ins(f"buffer_load_dwordx4 {vr(8+4*p,4)}, v2, s[8:11], s18 offen", "vmem", rd=[2], wr=R(8+4*p, 4))
        if p < 7: E.salu(f"s_add_u32 s18, s18, {PART}")
    E.salu("s_lshl_b32 s20, s17, 2")
    E.salu("s_add_u32 s20, s20, s19", srd=[19])
    E.salu("s_mul_i32 s21, s20, 5462")
    E.salu("s_lshr_b32 s21, s21, 16")
    E.salu("s_mul_i32 s22, s21, 12")
    E.salu("s_sub_u32 s22, s20, s22")
    E.salu("s_cmp_ge_u32 s22, 6")
    E.salu("s_cselect_b32 s23, 1, 0")
    E.salu("s_mul_i32 s24, s23, 6")
    E.salu("s_sub_u32 s24, s22, s24")
    E.salu("s_and_b32 s25, s16, 15")
    E.salu("s_mul_i32 s25, s25, 96")
    E.salu("s_lshl_b32 s24, s24, 4")
    E.salu("s_add_u32 s25, s25, s24")
    E.salu("s_mul_i32 s25, s25, 1792")
    E.salu("s_lshr_b32 s26, s16, 4")
    E.salu("s_mul_i32 s26, s26, 896")
    E.salu("s_add_u32 s25, s25, s26")
    E.salu("s_lshl_b32 s21, s21, 7")
    E.salu("s_add_u32 s25, s25, s21")
    E.salu("s_lshl_b32 s23, s23, 6")
    E.salu("s_add_u32 s25, s25, s23")
    E.valu("v_and_b32", 3, "15", 0)
    E.valu("v_mul_u32_u24", 3, "1792", 3)
    E.valu("v_and_b32", 4, "48", 0)
    E.valu("v_lshrrev_b32", 4, "1", 4)
    E.valu("v_add_u32", 3, 3, 4)
    E.salu("s_mov_b32 s27, 0xffff0000")
    ACC = 40
    for p in range(8):
        for k in range(4):
            src = 8 + 4 * p + k
            if p == 0:
                E.valu("v_lshlrev_b32", ACC + 2 * k, "16", src)
                E.valu("v_and_b32", ACC + 2 * k + 1, "s27", src)
            else:
                E.valu("v_lshlrev_b32", 5, "16", src)
                E.valu("v_and_b32", 6, "s27", src)
                E.valu("v_add_f32", ACC + 2 * k, ACC + 2 * k, 5)
                E.valu("v_add_f32", ACC + 2 * k + 1, ACC + 2 * k + 1, 6)
    for k in range(4):
        E.cvt(48 + k, ACC + 2 * k, ACC + 2 * k + 1)
    E.ins("buffer_store_dwordx2 v[48:49], v3, s[12:15], s25 offen", "vmem", rd=[48, 49, 3])
    E.ins("buffer_store_dwordx2 v[50:51], v3, s[12:15], s25 offen offset:32", "vmem", rd=[50, 51, 3])
    if cfg.dbg:
        E.wait_vm(0)
        E.raw("    s_memrealtime s[42:43]")
        E.salu("s_and_b32 s48, s2, 15"); E.salu("s_add_u32 s48, s48, s19"); E.salu("s_cmp_lg_u32 s48, 0")
        E.raw("    s_cbranch_scc1 L_exit2")
        E.salu("s_mov_b32 s46, 64"); E.salu("s_mov_b32 s47, 0x00020000")
        E.raw("    s_waitcnt lgkmcnt(0)")
        E.salu("s_not_b32 s40, s40")
        E.salu("s_mov_b64 exec, 1")
        E.valu("v_mov_b32", 1, "0"); E.valu("v_mov_b32", 2, "s40"); E.valu("v_mov_b32", 3, "s42")
        E.ins("buffer_atomic_umax v2, v1, s[44:47], 0 offen offset:8 sc1", "vmem", rd=[1, 2])
        E.ins("buffer_atomic_umax v3, v1, s[44:47], 0 offen offset:12 sc1", "vmem", rd=[1, 3])

def kdesc(name, vgpr, sgpr=102):
    acc = (vgpr + 3) // 4 * 4
    return f""".p2align 6
.amdhsa_kernel {name}
  .amdhsa_next_free_vgpr {vgpr}
  .amdhsa_next_free_sgpr {sgpr}
  .amdhsa_accum_offset {acc}
  .amdhsa_group_segment_fixed_size 0
  .amdhsa_kernarg_size 104
  .amdhsa_user_sgpr_count 2
  .amdhsa_user_sgpr_kernarg_segment_ptr 1
  .amdhsa_system_sgpr_workgroup_id_x 1
.end_amdhsa_kernel
"""

def generate(cfg):
    ref = open(f"cdna_kernels/{NAME}.s.ref").read().split("\n")
    hdr = [l for l in ref if l.startswith(";") and "@launch" not in l and "Override" not in l and "grid=ceil" not in l]
    out = "\n".join(hdr) + "\n"
    if cfg.fused: out += "; @launch grid=(256,1,1) block=(512,1,1) lds=163840\n"
    else:
        if cfg.only != 2: out += f"; @launch kernel={K1} grid=(256,1,1) block=(512,1,1) lds=163840\n"
        if cfg.only != 1: out += f"; @launch kernel={K2} grid=(672,1,1) block=(256,1,1) lds=0\n"
    out += '.amdgcn_target "amdgcn-amd-amdhsa--gfx950"\n.text\n'
    out += f".globl {K1}\n.p2align 8\n.type {K1},@function\n{K1}:\n"
    E = Emit(); prologue(E)
    st = (E.pos, dict(E.lastw), dict(E.sgpr_valu))
    compute(E, cfg)
    if cfg.prof:
        E.wait_vm(0); E.barrier()
    E.raw("    s_endpgm")
    E.label("L_loader")
    E.reset(); E.pos, E.lastw, E.sgpr_valu = st[0], dict(st[1]), dict(st[2])
    loader(E, cfg)
    E.label("L_exit")
    E.raw("    s_endpgm")
    out += E.text()
    if cfg.fused: return out + '.section .rodata,"a"\n' + kdesc(K1, 256)
    out += f".globl {K2}\n.p2align 8\n.type {K2},@function\n{K2}:\n"
    E = Emit(); reduce_kernel(E, cfg)
    E.label("L_exit2")
    E.raw("    s_endpgm")
    out += E.text()
    out += '.section .rodata,"a"\n' + kdesc(K1, 256) + kdesc(K2, 56)
    return out

if __name__ == "__main__":
    import argparse
    ap = argparse.ArgumentParser()
    ap.add_argument("-o", default=f"cdna_kernels/{NAME}.s")
    ap.add_argument("--prof", action="store_true")
    ap.add_argument("--dump", default=None)
    ap.add_argument("--set", nargs="*", default=[])
    a = ap.parse_args()
    cfg = Cfg(); cfg.prof = a.prof; cfg.dump = a.dump
    for kv in a.set:
        k, v = kv.split("="); assert hasattr(cfg, k), k; setattr(cfg, k, eval(v))
    open(a.o, "w").write(generate(cfg))
```
